```python
import torch

def _softmax(x, axis=-1):
    return torch.softmax(x, dim=axis)

def _gelu(x):
    return torch.nn.functional.gelu(x, approximate='tanh')

def _silu(x):
    return torch.nn.functional.silu(x)

def _sigmoid(x):
    return torch.sigmoid(x)

def _layernorm(x, axis=-1, eps=1e-05):
    m = x.mean(dim=axis, keepdim=True)
    v = x.var(dim=axis, keepdim=True, unbiased=False)
    return (x - m) / torch.sqrt(v + eps)

def _scatter_add(tgt, idx, src, axis=0):
    return tgt.clone().index_add_(axis, idx, src)

def _segment_sum(src, seg, n):
    out = torch.zeros((n,) + src.shape[1:], dtype=src.dtype)
    return out.index_add_(0, seg, src)

def _pad(x, pw):
    flat = tuple((v for pair in reversed(pw) for v in pair))
    return torch.nn.functional.pad(x, flat)
kernel_name = 'standalone__video_timesformer__vision'

def setup_inputs():

    _w = lambda a: (lambda t: t.to(torch.bfloat16) if t.is_floating_point() else t)(torch.as_tensor(a))
    T = 7
    p = 14
    HW = 384 // p * p
    N = (HW // p) ** 2
    C = 384
    return {'x': _w((lambda *s: torch.randn(*s, dtype=torch.bfloat16) * 0.1)(1, T, N, C)), 'wqkv_t': _w((lambda *s: torch.randn(*s, dtype=torch.bfloat16) * 0.1)(C, 3 * C)), 'wo_t': _w((lambda *s: torch.randn(*s, dtype=torch.bfloat16) * 0.1)(C, C)), 'wqkv_s': _w((lambda *s: torch.randn(*s, dtype=torch.bfloat16) * 0.1)(C, 3 * C)), 'wo_s': _w((lambda *s: torch.randn(*s, dtype=torch.bfloat16) * 0.1)(C, C))}

def reference(x, wqkv_t, wo_t, wqkv_s, wo_s):
    B, T, N, C = x.shape
    scale = C ** (-0.5)
    xt = (lambda x, *d: x.permute(*d))(x, 0, 2, 1, 3).reshape(B * N, T, C)
    h = _layernorm(xt, axis=-1)
    qkv = h @ wqkv_t
    q, k, v = (qkv[..., :C].clone(), qkv[..., C:2 * C].clone(), qkv[..., 2 * C:].clone())
    a = _softmax(torch.einsum('btc,bsc->bts', q, k) * scale, axis=-1)
    xt = xt + torch.einsum('bts,bsc->btc', a, v) @ wo_t
    x1 = (lambda x, *d: x.permute(*d))(xt.reshape(B, N, T, C), 0, 2, 1, 3)
    xs = x1.reshape(B * T, N, C)
    h = _layernorm(xs, axis=-1)
    qkv = h @ wqkv_s
    q, k, v = (qkv[..., :C].clone(), qkv[..., C:2 * C].clone(), qkv[..., 2 * C:].clone())
    a = _softmax(torch.einsum('bnc,bmc->bnm', q, k) * scale, axis=-1)
    xs = xs + torch.einsum('bnm,bmc->bnc', a, v) @ wo_s
    return xs.reshape(B, T, N, C)
```

```python
import re, copy

_REG = re.compile(r'^([vas])(\d+)$')
_RNG = re.compile(r'^([vas])\[(\d+):(\d+)\]$')
TRANS = ('v_exp_f32', 'v_log_f32', 'v_rcp_f32', 'v_rsq_f32', 'v_sqrt_f32', 'v_sin_f32', 'v_cos_f32')


def regs_of(tok):
    tok = tok.strip()
    if tok.startswith('-'):
        tok = tok[1:]
    m = re.match(r'^abs\((.*)\)$', tok)
    if m:
        tok = m.group(1)
    m = _REG.match(tok)
    if m:
        return [m.group(1) + m.group(2)]
    m = _RNG.match(tok)
    if m:
        return [m.group(1) + str(i) for i in range(int(m.group(2)), int(m.group(3)) + 1)]
    if tok == 'vcc':
        return ['vcc']
    if tok == 'exec':
        return ['exec']
    if tok == 'm0':
        return ['m0']
    return []


def v(i, n=1):
    return f'v{i}' if n == 1 else f'v[{i}:{i + n - 1}]'


def a(i, n=1):
    return f'a{i}' if n == 1 else f'a[{i}:{i + n - 1}]'


def s(i, n=1):
    return f's{i}' if n == 1 else f's[{i}:{i + n - 1}]'


class K:
    def __init__(self):
        self.out = []
        self.t = 0
        self.valu_w = {}
        self.trans_w = {}
        self.mfma_w = {}
        self.mfma_c = {}
        self.sgpr_w = {}
        self.store_r = {}
        self.m0_w = -100
        self.vm = []
        self.lg = []
        self.nlabel = 0

    def raw(self, text):
        self.out.append(text)

    def comment(self, text):
        self.out.append('    ; ' + text)

    def label(self, name):
        self.out.append(name + ':')

    def newlabel(self, p='L'):
        self.nlabel += 1
        return f'{p}_{self.nlabel}'

    def nop(self, n):
        while n > 0:
            k = min(n, 16)
            self.out.append(f'    s_nop {k - 1}')
            self.t += k
            n -= k

    def snapshot(self):
        return copy.deepcopy((self.t, self.valu_w, self.trans_w, self.mfma_w, self.mfma_c, self.sgpr_w,
                              self.store_r, self.m0_w))

    def restore(self, snap):
        (self.t, self.valu_w, self.trans_w, self.mfma_w, self.mfma_c, self.sgpr_w, self.store_r,
         self.m0_w) = copy.deepcopy(snap)

    def op(self, text):
        t0 = text.strip()
        mn, _, rest = t0.partition(' ')
        ops = [o.strip() for o in rest.split(',')] if rest else []
        toks = []
        for o in ops:
            toks.append(o.split()[0] if o else o)
        mods = rest
        is_mfma = mn.startswith('v_mfma')
        is_valu = mn.startswith('v_') and not is_mfma
        is_ds = mn.startswith('ds_')
        is_vmem = mn.startswith('buffer_') or mn.startswith('global_')
        is_trans = mn.replace('_e32', '').replace('_e64', '') in TRANS
        dst, src = [], []
        if is_mfma:
            dst = regs_of(toks[0])
            srcA = regs_of(toks[1]); srcB = regs_of(toks[2]); srcC = regs_of(toks[3])
            src = srcA + srcB + srcC
        elif is_valu:
            if mn.startswith('v_permlane'):
                dst = regs_of(toks[0]) + regs_of(toks[1]); src = list(dst)
            else:
                dst = regs_of(toks[0])
                for x in toks[1:]:
                    src += regs_of(x)
                if mn.startswith('v_fmac') or mn.startswith('v_pk_fmac'):
                    src += dst
                if mn.startswith('v_cndmask') and len(toks) == 3:
                    src += ['vcc']
        elif is_ds:
            if mn.startswith('ds_read') or mn.startswith('ds_bpermute') or mn.startswith('ds_swizzle'):
                dst = regs_of(toks[0])
                for x in toks[1:]:
                    src += regs_of(x)
            else:
                for x in toks:
                    src += regs_of(x)
        elif is_vmem:
            lds = re.search(r'\blds\b', mods) is not None
            if 'load' in mn and not lds:
                dst = regs_of(toks[0])
                for x in toks[1:]:
                    src += regs_of(x)
            else:
                for x in toks:
                    src += regs_of(x)
        else:
            if toks:
                dst = regs_of(toks[0])
                for x in toks[1:]:
                    src += regs_of(x)

        need = self.t

        def req(x):
            nonlocal need
            if x > need:
                need = x

        if is_mfma:
            N = 12 if '32x32' in mn else 8
            for r in src:
                if r in self.valu_w:
                    req(self.valu_w[r] + 3)
            for r in srcA + srcB:
                if r in self.mfma_w:
                    p, n, _, _ = self.mfma_w[r]
                    req(p + n + 1)
            for r in srcC:
                if r in self.mfma_w:
                    p, n, f, sz = self.mfma_w[r]
                    if not (f == srcC[0] and sz == len(srcC) and n == N):
                        req(p + n - 2 + 1)
            for r in dst:
                if r in self.mfma_w and r not in srcC:
                    p, n, f, sz = self.mfma_w[r]
                    req(p + n + 1)
        elif is_valu or is_ds or is_vmem:
            for r in src + dst:
                if r in self.mfma_w:
                    p, n, _, _ = self.mfma_w[r]
                    req(p + n + 1)
            if is_valu:
                for r in dst:
                    if r in self.mfma_c:
                        p, n = self.mfma_c[r]
                        req(p + n + 1)
                    if r in self.store_r:
                        req(self.store_r[r] + 3)
                if not is_trans:
                    for r in src:
                        if r in self.trans_w:
                            req(self.trans_w[r] + 2)
                if mn.startswith('v_permlane'):
                    for r in src:
                        if r in self.valu_w:
                            req(self.valu_w[r] + 3)
                if mn.startswith('v_readfirstlane') or mn.startswith('v_readlane'):
                    for r in src:
                        if r in self.valu_w:
                            req(self.valu_w[r] + 2)
                for r in src:
                    if r in self.sgpr_w:
                        req(self.sgpr_w[r] + 3)
            else:
                for r in src:
                    if r in self.sgpr_w:
                        req(self.sgpr_w[r] + 6)
                for r in dst:
                    if r in self.store_r:
                        req(self.store_r[r] + 2)
                if is_vmem and re.search(r'\blds\b', mods):
                    req(self.m0_w + 2)
        else:
            for r in src:
                if r in self.sgpr_w:
                    req(self.sgpr_w[r] + 2)
        if need > self.t:
            self.nop(need - self.t)
        self.out.append('    ' + t0)
        now = self.t
        self.t += 1
        if is_mfma:
            N = 12 if '32x32' in mn else 8
            for r in dst:
                self.mfma_w[r] = (now, N, dst[0], len(dst))
                self.valu_w.pop(r, None); self.trans_w.pop(r, None)
            for r in srcC:
                self.mfma_c[r] = (now, 7 if N == 12 else 3)
        elif is_valu:
            for r in dst:
                if r[0] in 'va' and r not in ('vcc',):
                    self.valu_w[r] = now
                    self.mfma_w.pop(r, None)
                    if is_trans:
                        self.trans_w[r] = now
                    else:
                        self.trans_w.pop(r, None)
                else:
                    self.sgpr_w[r] = now
        elif is_ds or is_vmem:
            for r in dst:
                self.valu_w.pop(r, None); self.trans_w.pop(r, None); self.mfma_w.pop(r, None)
            if is_vmem and 'store' in mn and ('x4' in mn or 'x3' in mn):
                for r in regs_of(toks[0]):
                    self.store_r[r] = now
        else:
            for r in dst:
                if r == 'm0':
                    self.m0_w = now
                self.sgpr_w.pop(r, None)

    def vmem(self, text, tag=None):
        self.op(text)
        self.vm.append(tag)

    def ds(self, text, tag=None):
        self.op(text)
        self.lg.append(tag)

    def wait_vm(self, tag):
        idx = max((i for i, t in enumerate(self.vm) if t == tag), default=None)
        if idx is None:
            return
        n = len(self.vm) - 1 - idx
        self.op(f's_waitcnt vmcnt({min(n, 63)})')
        self.vm = self.vm[idx + 1:] if n <= 63 else self.vm[len(self.vm) - 63:]

    def wait_lg(self, tag):
        idx = max((i for i, t in enumerate(self.lg) if t == tag), default=None)
        if idx is None:
            return
        n = len(self.lg) - 1 - idx
        self.op(f's_waitcnt lgkmcnt({min(n, 15)})')
        self.lg = self.lg[idx + 1:] if n <= 15 else self.lg[len(self.lg) - 15:]

    def wait_vm_all(self):
        self.op('s_waitcnt vmcnt(0)')
        self.vm = []

    def wait_lg_all(self):
        self.op('s_waitcnt lgkmcnt(0)')
        self.lg = []

    def barrier(self):
        self.op('s_waitcnt lgkmcnt(0)')
        self.lg = []
        self.op('s_barrier')

    def text(self):
        return '\n'.join(self.out)
```

```python
import sys, os
sys.path.insert(0, os.path.dirname(__file__))
from asmlib import K, v, a, s

T, N, C = 7, 729, 384
W1, W2, W3, W4 = 0, 0x48000, 0x90000, 0xD8000
H2, Q2, X1 = 0x200000, 0x600000, 0xA00000
TILE = 24576
FRAME = 23 * TILE
XBYTES = T * N * C * 2
WS_BYTES = 0x10000000
BIG = 0x7F000000
SCALE_LOG2E = (C ** -0.5) * 1.4426950408889634

import struct


def f32hex(x):
    return '0x%08x' % struct.unpack('<I', struct.pack('<f', x))[0]


def srd(k, base, ptr, nbytes):
    k.op(f's_mov_b32 s{base}, s{ptr}')
    k.op(f's_and_b32 s{base + 1}, s{ptr + 1}, 0xffff')
    k.op(f's_mov_b32 s{base + 2}, {nbytes}')
    k.op(f's_mov_b32 s{base + 3}, 0x00020000')


def header(k, name):
    k.raw(f'.globl {name}')
    k.raw('.p2align 8')
    k.raw(f'.type {name},@function')
    k.raw(f'{name}:')


def descriptor(name, nvgpr, accum, nsgpr):
    return f'''.amdhsa_kernel {name}
  .amdhsa_next_free_vgpr {nvgpr}
  .amdhsa_next_free_sgpr {nsgpr}
  .amdhsa_accum_offset {accum}
  .amdhsa_group_segment_fixed_size 0
  .amdhsa_kernarg_size 64
  .amdhsa_user_sgpr_count 2
  .amdhsa_user_sgpr_kernarg_segment_ptr 1
  .amdhsa_system_sgpr_workgroup_id_x 1
  .amdhsa_float_denorm_mode_32 3
.end_amdhsa_kernel'''


def gen_k0():
    k = K()
    header(k, 'fold_kernel')
    k.op('s_cmp_ge_u32 s2, 144')
    k.op('s_cbranch_scc1 K0_END')
    k.op('s_load_dwordx4 s[4:7], s[0:1], 8')
    k.op('s_load_dwordx4 s[8:11], s[0:1], 24')
    k.op('s_load_dwordx2 s[12:13], s[0:1], 56')
    k.op('v_lshrrev_b32 v1, 6, v0')
    k.op('v_readfirstlane_b32 s16, v1')
    k.op('v_and_b32 v1, 63, v0')
    k.op('s_mul_hi_u32 s17, s2, 0x15555556')
    k.op('s_mul_i32 s18, s17, 12')
    k.op('s_sub_u32 s18, s2, s18')
    k.op('s_waitcnt lgkmcnt(0)')
    k.op('s_cmp_lt_u32 s16, 2')
    k.op('s_cselect_b32 s20, s4, s8')
    k.op('s_cselect_b32 s21, s5, s9')
    k.op('s_cselect_b32 s22, s6, s10')
    k.op('s_cselect_b32 s23, s7, s11')
    srd(k, 24, 20, C * 3 * C * 2)
    srd(k, 28, 22, C * C * 2)
    srd(k, 32, 12, WS_BYTES)
    k.op('s_cmp_ge_u32 s2, 126')
    k.op('s_cbranch_scc1 K0_NOZERO')
    k.op('s_mul_hi_u32 s36, s2, 0x2AAAAAAB')
    k.op('s_mul_i32 s37, s36, 6')
    k.op('s_sub_u32 s37, s2, s37')
    k.op('s_mul_hi_u32 s38, s36, 0x24924925')
    k.op('s_mul_i32 s39, s38, 7')
    k.op('s_sub_u32 s39, s36, s39')
    k.op('s_lshl_b32 s38, s38, 22')
    k.op(f's_mul_i32 s39, s39, {FRAME}')
    k.op('s_add_u32 s38, s38, s39')
    k.op('s_lshl_b32 s37, s37, 12')
    k.op('s_add_u32 s38, s38, s37')
    k.op(f's_add_u32 s38, s38, {H2 + 22 * TILE}')
    k.op('v_lshlrev_b32 v2, 4, v0')
    k.op('v_mov_b32 v4, 0')
    k.op('v_mov_b32 v5, 0')
    k.op('v_mov_b32 v6, 0')
    k.op('v_mov_b32 v7, 0')
    k.op('buffer_store_dwordx4 v[4:7], v2, s[32:35], s38 offen')
    k.label('K0_NOZERO')
    k.nop(3)
    k.op('v_and_b32 v2, 31, v1')
    k.op('v_lshrrev_b32 v3, 5, v1')
    k.op('s_and_b32 s19, s16, 1')
    k.op('s_lshl_b32 s36, s18, 5')
    k.op('v_add_u32 v4, s36, v2')
    k.op('s_movk_i32 s37, 2304')
    k.op('v_mul_lo_u32 v4, v4, s37')
    k.op('v_lshl_add_u32 v4, v3, 4, v4')
    k.op('s_mul_i32 s38, s19, 1536')
    k.op('v_add_u32 v4, s38, v4')
    AF = 16
    BF = 112
    for cc in range(24):
        k.vmem(f'buffer_load_dwordx4 {v(AF + 4 * cc, 4)}, v4, s[24:27], 0 offen offset:{32 * cc}', ('A', cc))
    k.op('s_cmp_eq_u32 s19, 1')
    k.op('s_cbranch_scc1 K0_VO')
    k.op('s_lshl_b32 s36, s17, 5')
    k.op('v_add_u32 v5, s36, v2')
    k.op('v_mul_lo_u32 v5, v5, s37')
    k.op('v_lshl_add_u32 v5, v3, 4, v5')
    k.op('v_add_u32 v5, 768, v5')
    for cc in range(24):
        k.op(f'buffer_load_dwordx4 {v(BF + 4 * cc, 4)}, v5, s[24:27], 0 offen offset:{32 * cc}')
    k.op('s_waitcnt vmcnt(0)')
    k.op(f's_mov_b32 s40, {f32hex(SCALE_LOG2E)}')
    k.op('s_branch K0_MM')
    k.label('K0_VO')
    k.op('v_lshrrev_b32 v5, 2, v1')
    k.op('s_movk_i32 s36, 768')
    k.op('v_mul_lo_u32 v5, v5, s36')
    k.op('v_and_b32 v6, 3, v1')
    k.op('v_lshl_add_u32 v5, v6, 4, v5')
    k.op('s_lshl_b32 s36, s17, 6')
    k.op('v_add_u32 v5, s36, v5')
    k.op('s_mul_i32 s41, s16, 24576')
    for i in range(24):
        k.op(f's_add_u32 s42, s41, {i * 1024}')
        k.op('s_mov_b32 m0, s42')
        k.op(f's_mov_b32 s43, {i * 12288}')
        k.op('buffer_load_dwordx4 v5, s[28:31], s43 offen lds')
    k.op('v_and_b32 v6, 15, v1')
    k.op('v_lshrrev_b32 v7, 2, v6')
    k.op('v_lshl_add_u32 v7, v3, 3, v7')
    k.op('v_lshlrev_b32 v7, 6, v7')
    k.op('v_and_b32 v8, 3, v6')
    k.op('v_lshl_add_u32 v7, v8, 3, v7')
    k.op('v_bfe_u32 v8, v1, 4, 1')
    k.op('v_lshl_add_u32 v7, v8, 5, v7')
    k.op('v_add_u32 v7, s41, v7')
    k.op('s_waitcnt vmcnt(0)')
    for cc in range(24):
        for p in range(2):
            k.op(f'ds_read_b64_tr_b16 {v(BF + 4 * cc + 2 * p, 2)}, v7 offset:{cc * 1024 + p * 256}')
    k.op('s_waitcnt lgkmcnt(0)')
    k.op('s_mov_b32 s40, 1.0')
    k.label('K0_MM')
    k.vm = []
    k.nop(2)
    D = 208
    for cc in range(24):
        c = '0' if cc == 0 else v(D, 16)
        k.op(f'v_mfma_f32_32x32x16_bf16 {v(D, 16)}, {v(AF + 4 * cc, 4)}, {v(BF + 4 * cc, 4)}, {c}')
    for r in range(16):
        k.op(f'v_mul_f32 {v(D + r)}, s40, {v(D + r)}')
    for r in range(8):
        k.op(f'v_cvt_pk_bf16_f32 {v(8 + r)}, {v(D + 2 * r)}, {v(D + 2 * r + 1)}')
    k.op(f's_mul_i32 s36, s16, {W2}')
    k.op('s_mul_i32 s37, s17, 24')
    k.op('s_lshl_b32 s38, s18, 1')
    k.op('s_add_u32 s37, s37, s38')
    k.op('s_lshl_b32 s37, s37, 10')
    k.op('s_add_u32 s36, s36, s37')
    k.op('v_lshlrev_b32 v2, 4, v1')
    k.op('buffer_store_dwordx4 v[8:11], v2, s[32:35], s36 offen')
    k.op('buffer_store_dwordx4 v[12:15], v2, s[32:35], s36 offen offset:1024')
    k.label('K0_END')
    k.op('s_endpgm')
    return k.text(), descriptor('fold_kernel', 224, 224, 48)


LH, LO_, LH2, LSP, LST1, LST2 = 0, 24576, 0, 49152, 0, 1024
K1_LDS = 67584
RING = 48


def gen_k1():
    k = K()
    header(k, 'temporal_kernel')
    k.op('s_cmp_ge_u32 s2, 183')
    k.op('s_cbranch_scc1 K1_END')
    k.op('s_load_dwordx2 s[4:5], s[0:1], 0')
    k.op('s_load_dwordx2 s[6:7], s[0:1], 56')
    k.op('v_lshrrev_b32 v1, 6, v0')
    k.op('v_readfirstlane_b32 s16, v1')
    k.op('v_and_b32 v10, 63, v0')
    k.op('v_lshlrev_b32 v1, 4, v10')
    k.op('v_and_b32 v11, 31, v10')
    k.op('v_lshrrev_b32 v12, 5, v10')
    k.op('v_lshrrev_b32 v13, 3, v11')
    k.op('v_and_b32 v14, 7, v11')
    k.op('s_lshl_b32 s18, s2, 2')
    k.op('v_add_u32 v15, s18, v13')
    k.op('v_cmp_gt_u32 s[30:31], 7, v14')
    k.op('s_movk_i32 s19, 729')
    k.op('v_cmp_gt_u32 s[32:33], s19, v15')
    k.op('s_and_b64 s[30:31], s[30:31], s[32:33]')
    k.op('v_mul_lo_u32 v2, v14, s19')
    k.op('v_add_u32 v2, v2, v15')
    k.op('s_movk_i32 s19, 768')
    k.op('v_mul_lo_u32 v2, v2, s19')
    k.op('v_lshl_add_u32 v2, v12, 3, v2')
    k.op('s_mul_i32 s19, s16, 192')
    k.op('v_add_u32 v2, s19, v2')
    k.op(f'v_mov_b32 v248, {BIG}')
    k.op('v_cndmask_b32 v2, v248, v2, s[30:31]')
    k.op('s_waitcnt lgkmcnt(0)')
    srd(k, 8, 4, XBYTES)
    srd(k, 12, 6, WS_BYTES)
    XF, ACC, PK, BF, S_ = 16, 64, 112, 136, 232
    for i in range(6):
        for h in range(2):
            k.vmem(f'buffer_load_dwordx2 {v(PK + 4 * i + 2 * h, 2)}, v2, s[8:11], 0 offen offset:{32 * i + 16 * h}',
                   ('x', i, h))
    k.op('s_mul_i32 s17, s16, 73728')
    segs = [W1, W2, W3]

    def wload(idx):
        seg, kk = idx // 72, idx % 72
        if kk % 4 == 0:
            k.op(f's_add_u32 s18, s17, {segs[seg] + kk * 1024}')
        k.vmem(f'buffer_load_dwordx4 {a(4 * (idx % RING), 4)}, v1, s[12:15], s18 offen offset:{(kk % 4) * 1024}',
               ('w', idx))

    for idx in range(RING):
        wload(idx)

    k.op(f's_mov_b32 s19, {FRAME}')
    k.op('v_mul_lo_u32 v3, v14, s19')
    k.op('v_lshrrev_b32 v249, 5, v15')
    k.op(f's_mov_b32 s19, {TILE}')
    k.op('v_mul_lo_u32 v249, v249, s19')
    k.op('v_add_u32 v3, v3, v249')
    k.op('v_and_b32 v249, 31, v15')
    k.op('v_lshl_add_u32 v4, v249, 6, v3')
    k.op('s_mul_i32 s19, s16, 6144')
    k.op('v_add_u32 v4, s19, v4')
    k.op('v_bfe_u32 v250, v15, 2, 2')
    k.op('v_xor_b32 v251, v250, v12')
    k.op('v_add_u32 v252, 2, v12')
    k.op('v_xor_b32 v252, v250, v252')
    k.op('v_lshl_add_u32 v5, v252, 4, v4')
    k.op('v_lshl_add_u32 v4, v251, 4, v4')
    k.op('v_lshl_add_u32 v249, v12, 5, v249')
    k.op('v_lshl_add_u32 v3, v249, 4, v3')
    k.op('v_add_u32 v3, s19, v3')
    k.op('v_cndmask_b32 v3, v248, v3, s[30:31]')
    k.op('v_cndmask_b32 v4, v248, v4, s[30:31]')
    k.op('v_cndmask_b32 v5, v248, v5, s[30:31]')
    k.op('v_lshlrev_b32 v7, 3, v11')
    k.op('v_add_u32 v7, 0x10000, v7')
    k.op('s_lshl_b32 s19, s16, 8')
    k.op('v_add_u32 v6, s19, v7')
    k.op('v_and_b32 v249, 15, v10')
    k.op('v_lshrrev_b32 v250, 2, v249')
    k.op('v_lshl_add_u32 v250, v12, 2, v250')
    k.op('v_lshlrev_b32 v8, 4, v250')
    k.op('v_bfe_u32 v250, v10, 4, 1')
    k.op('v_lshl_add_u32 v8, v250, 10, v8')
    k.op('v_and_b32 v250, 1, v249')
    k.op('v_lshl_add_u32 v8, v250, 9, v8')
    k.op('v_bfe_u32 v250, v249, 1, 1')
    k.op('v_lshl_add_u32 v8, v250, 3, v8')
    k.op('s_mul_i32 s19, s16, 6144')
    k.op('v_add_u32 v8, s19, v8')
    k.op('v_add_u32 v9, s19, v1')
    for g in range(4):
        k.op(f'v_cmp_eq_u32 s[{20 + 2 * g}:{21 + 2 * g}], {g}, v13')
    k.op('s_mov_b32 s28, 0')
    k.op('s_mov_b32 s29, -1')
    k.op('s_mov_b32 s34, 0xffff0000')
    k.op(f's_mov_b32 s35, {f32hex(1.0 / 96)}')
    k.op(f's_mov_b32 s36, {f32hex(1.0 / 384)}')
    k.op(f's_mov_b32 s37, {f32hex(1e-5)}')
    k.op(f's_mov_b32 s38, {f32hex(96.0)}')
    k.op('s_movk_i32 s39, 4096')
    k.op('s_mov_b32 s40, 0xff800000')

    def unpack():
        for j in range(24):
            k.op(f'v_lshlrev_b32 {v(XF + 2 * j)}, 16, {v(PK + j)}')
            k.op(f'v_and_b32 {v(XF + 2 * j + 1)}, s34, {v(PK + j)}')

    def xhalf_sum(r, tmp):
        k.op(f'v_mov_b32 {v(tmp)}, {v(r)}')
        k.op(f'v_permlane32_swap_b32 {v(r)}, {v(tmp)}')
        k.op(f'v_add_f32 {v(r)}, {v(r)}, {v(tmp)}')

    def layernorm(st):
        t0, t1, t2, t3 = 248, 249, 250, 251
        for c in range(4):
            k.op(f'v_add_f32 {v(t0 + c)}, {v(XF + c)}, {v(XF + 4 + c)}')
        for j in range(8, 48, 4):
            for c in range(4):
                k.op(f'v_add_f32 {v(t0 + c)}, {v(t0 + c)}, {v(XF + j + c)}')
        k.op(f'v_add_f32 {v(t0)}, {v(t0)}, {v(t1)}')
        k.op(f'v_add_f32 {v(t2)}, {v(t2)}, {v(t3)}')
        k.op(f'v_add_f32 {v(t0)}, {v(t0)}, {v(t2)}')
        xhalf_sum(t0, t1)
        k.op(f'v_mul_f32 {v(t1)}, s35, {v(t0)}')
        for j in range(48):
            c = j % 4
            k.op(f'v_sub_f32 {v(t2)}, {v(XF + j)}, {v(t1)}')
            if j < 4:
                k.op(f'v_mul_f32 {v(252 + c)}, {v(t2)}, {v(t2)}')
            else:
                k.op(f'v_fmac_f32 {v(252 + c)}, {v(t2)}, {v(t2)}')
        k.op('v_add_f32 v252, v252, v253')
        k.op('v_add_f32 v254, v254, v255')
        k.op(f'v_add_f32 {v(t1)}, v252, v254')
        xhalf_sum(t1, t2)
        k.ds(f'ds_write_b64 v6, {v(t0, 2)} offset:{st}')
        k.barrier()
        for w in range(4):
            k.ds(f'ds_read_b64 {v(S_ + 2 * w, 2)}, v7 offset:{st + 256 * w}', 'st')
        k.wait_lg('st')
        k.op(f'v_add_f32 {v(t0)}, {v(S_)}, {v(S_ + 2)}')
        k.op(f'v_add_f32 {v(t1)}, {v(S_ + 4)}, {v(S_ + 6)}')
        k.op(f'v_add_f32 {v(t0)}, {v(t0)}, {v(t1)}')
        k.op(f'v_mul_f32 {v(t0)}, s36, {v(t0)}')
        k.op(f'v_add_f32 {v(t1)}, {v(S_ + 1)}, {v(S_ + 3)}')
        k.op(f'v_add_f32 {v(t2)}, {v(S_ + 5)}, {v(S_ + 7)}')
        k.op(f'v_add_f32 {v(t1)}, {v(t1)}, {v(t2)}')
        k.op(f'v_mov_b32 {v(t3)}, 0')
        for w in range(4):
            k.op(f'v_fma_f32 {v(t2)}, {v(S_ + 2 * w)}, s35, -{v(t0)}')
            k.op(f'v_fmac_f32 {v(t3)}, {v(t2)}, {v(t2)}')
        k.op(f'v_fma_f32 {v(t1)}, {v(t3)}, s38, {v(t1)}')
        k.op(f'v_mov_b32 {v(t2)}, s37')
        k.op(f'v_fma_f32 {v(t1)}, {v(t1)}, s36, {v(t2)}')
        k.op(f'v_rsq_f32 {v(t1)}, {v(t1)}')
        k.op(f'v_mul_f32 {v(t0)}, {v(t0)}, {v(t1)}')
        for j in range(24):
            k.op(f'v_fma_f32 {v(t2)}, {v(XF + 2 * j)}, {v(t1)}, -{v(t0)}')
            k.op(f'v_fma_f32 {v(t3)}, {v(XF + 2 * j + 1)}, {v(t1)}, -{v(t0)}')
            k.op(f'v_cvt_pk_bf16_f32 {v(PK + j)}, {v(t2)}, {v(t3)}')

    def share(region):
        for i in range(6):
            k.ds(f'ds_write_b128 v9, {v(PK + 4 * i, 4)} offset:{region + 1024 * i}')
        k.barrier()
        for kc in range(24):
            k.ds(f'ds_read_b128 {v(BF + 4 * kc, 4)}, v1 offset:{region + 1024 * kc}', ('b', kc))

    def gemm(seg):
        for jt in range(3):
            for kc in range(24):
                idx = seg * 72 + jt * 24 + kc
                k.wait_vm(('w', idx))
                if jt == 0:
                    k.wait_lg(('b', kc))
                c = '0' if kc == 0 else v(ACC + 16 * jt, 16)
                k.op(f'v_mfma_f32_32x32x16_bf16 {v(ACC + 16 * jt, 16)}, {a(4 * (idx % RING), 4)}, '
                     f'{v(BF + 4 * kc, 4)}, {c}')
                if idx + RING < 216:
                    wload(idx + RING)

    def pack_acc():
        for j in range(24):
            k.op(f'v_cvt_pk_bf16_f32 {v(PK + j)}, {v(ACC + 2 * j)}, {v(ACC + 2 * j + 1)}')

    def store_frags(area):
        for i in range(6):
            if i in (0, 4):
                k.op(f's_mov_b32 s41, {area + (4096 if i == 4 else 0)}')
            k.vmem(f'buffer_store_dwordx4 {v(PK + 4 * i, 4)}, v3, s[12:15], s41 offen offset:{(i % 4) * 1024}')

    k.wait_vm(('x', 5, 1))
    unpack()
    layernorm(LST1)
    share(LH)
    gemm(0)
    pack_acc()
    for i in range(6):
        k.ds(f'ds_read_b128 {v(BF + 4 * i, 4)}, v9 offset:{LH + 1024 * i}', ('o', i))
    for i in range(6):
        k.wait_lg(('o', i))
        c = '0' if i == 0 else v(S_, 16)
        k.op(f'v_mfma_f32_32x32x16_bf16 {v(S_, 16)}, {v(BF + 4 * i, 4)}, {v(PK + 4 * i, 4)}, {c}')
    k.op('s_lshl_b32 s19, s16, 12')
    k.op('v_add_u32 v248, s19, v1')
    for q in range(4):
        k.ds(f'ds_write_b128 v248, {v(S_ + 4 * q, 4)} offset:{LSP + 1024 * q}')
    k.barrier()
    SR = BF + 24
    for w in range(4):
        for q in range(4):
            k.ds(f'ds_read_b128 {v(SR + 16 * w + 4 * q, 4)}, v1 offset:{LSP + 4096 * w + 1024 * q}', ('sp', w))
    for c in range(3):
        for m in range(2):
            for p in range(2):
                k.ds(f'ds_read_b64_tr_b16 {v(BF + 8 * c + 4 * m + 2 * p, 2)}, v8 '
                     f'offset:{LH + c * 2048 + m * 256 + p * 128}', ('vt', c, m))
    k.wait_lg(('sp', 3))
    for r in range(16):
        k.op(f'v_add_f32 {v(S_ + r)}, {v(SR + r)}, {v(SR + 16 + r)}')
        k.op(f'v_add_f32 {v(SR + 32 + r)}, {v(SR + 32 + r)}, {v(SR + 48 + r)}')
    for r in range(16):
        k.op(f'v_add_f32 {v(S_ + r)}, {v(S_ + r)}, {v(SR + 32 + r)}')
    for i in range(4):
        k.op(f'v_cndmask_b32 {v(248 + i)}, {v(S_ + i)}, {v(S_ + 4 + i)}, s[22:23]')
        k.op(f'v_cndmask_b32 {v(248 + i)}, {v(248 + i)}, {v(S_ + 8 + i)}, s[24:25]')
        k.op(f'v_cndmask_b32 {v(248 + i)}, {v(248 + i)}, {v(S_ + 12 + i)}, s[26:27]')
    k.op('v_mov_b32 v252, s40')
    k.op('v_cndmask_b32 v251, v251, v252, s[28:29]')
    k.op('v_max3_f32 v252, v248, v249, v250')
    k.op('v_max_f32 v252, v252, v251')
    k.op('v_mov_b32 v253, v252')
    k.op('v_permlane32_swap_b32 v252, v253')
    k.op('v_max_f32 v252, v252, v253')
    for i in range(4):
        k.op(f'v_sub_f32 {v(248 + i)}, {v(248 + i)}, v252')
    for i in range(4):
        k.op(f'v_exp_f32 {v(248 + i)}, {v(248 + i)}')
    k.op('v_add_f32 v252, v248, v249')
    k.op('v_add_f32 v253, v250, v251')
    k.op('v_add_f32 v252, v252, v253')
    xhalf_sum(252, 253)
    k.op('v_rcp_f32 v252, v252')
    for i in range(4):
        k.op(f'v_mul_f32 {v(248 + i)}, {v(248 + i)}, v252')
    k.op('v_cvt_pk_bf16_f32 v252, v248, v249')
    k.op('v_cvt_pk_bf16_f32 v253, v250, v251')
    PF = BF + 88
    for g in range(4):
        for j in range(2):
            k.op(f'v_cndmask_b32 {v(PF + 2 * g + j)}, 0, {v(252 + j)}, s[{20 + 2 * g}:{21 + 2 * g}]')
    for c in range(3):
        for m in range(2):
            k.wait_lg(('vt', c, m))
            cc = '0' if m == 0 else v(ACC + 16 * c, 16)
            k.op(f'v_mfma_f32_32x32x16_bf16 {v(ACC + 16 * c, 16)}, {v(BF + 8 * c + 4 * m, 4)}, '
                 f'{v(PF + 4 * m, 4)}, {cc}')
    pack_acc()
    share(LO_)
    gemm(1)
    for j in range(48):
        k.op(f'v_add_f32 {v(ACC + j)}, {v(ACC + j)}, {v(XF + j)}')
    pack_acc()
    store_frags(X1)
    unpack()
    layernorm(LST2)
    for i in range(6):
        so = f'{H2}' if i < 4 else f'{H2 + 4096}'
        if i in (0, 4):
            k.op(f's_mov_b32 s41, {so}')
        k.vmem(f'buffer_store_dwordx4 {v(PK + 4 * i, 4)}, {v(4 + i % 2)}, s[12:15], s41 offen '
               f'offset:{((i // 2) % 2) * 2048}')
    share(LH2)
    gemm(2)
    pack_acc()
    store_frags(Q2)
    k.label('K1_END')
    k.op('s_endpgm')
    return k.text(), descriptor('temporal_kernel', 256 + 4 * RING, 256, 48)


K2_LDS = 163840


def gen_k2():
    k = K()
    header(k, 'spatial_kernel')
    k.op('s_cmp_ge_u32 s2, 184')
    k.op('s_cbranch_scc1 K2_END')
    k.op('s_and_b32 s17, s2, 7')
    k.op('s_cmp_eq_u32 s17, 7')
    k.op('s_cbranch_scc1 K2_END')
    k.op('s_lshr_b32 s18, s2, 3')
    k.op('s_load_dwordx2 s[4:5], s[0:1], 40')
    k.op('s_load_dwordx2 s[6:7], s[0:1], 56')
    k.op('v_lshrrev_b32 v1, 6, v0')
    k.op('v_readfirstlane_b32 s16, v1')
    k.op('v_and_b32 v8, 63, v0')
    k.op('v_lshlrev_b32 v1, 4, v8')
    k.op('v_and_b32 v9, 31, v8')
    k.op('v_lshrrev_b32 v10, 5, v8')
    k.op('s_mul_i32 s19, s16, 40960')
    k.op('v_bfe_u32 v11, v9, 2, 2')
    k.op('v_lshlrev_b32 v12, 6, v9')
    k.op('v_add_u32 v12, s19, v12')
    k.op('v_xor_b32 v13, v11, v10')
    k.op('v_lshl_add_u32 v2, v13, 4, v12')
    k.op('v_add_u32 v13, 2, v10')
    k.op('v_xor_b32 v13, v11, v13')
    k.op('v_lshl_add_u32 v3, v13, 4, v12')
    k.op('v_and_b32 v11, 15, v8')
    k.op('v_lshrrev_b32 v12, 2, v11')
    k.op('v_lshl_add_u32 v12, v10, 2, v12')
    k.op('v_lshlrev_b32 v12, 6, v12')
    k.op('v_add_u32 v12, s19, v12')
    k.op('v_bfe_u32 v13, v11, 1, 1')
    k.op('v_lshl_add_u32 v12, v13, 3, v12')
    k.op('v_bfe_u32 v13, v8, 4, 1')
    k.op('v_and_b32 v14, 1, v11')
    k.op('v_lshl_add_u32 v13, v13, 1, v14')
    k.op('v_xor_b32 v14, v13, v10')
    k.op('v_lshl_add_u32 v4, v14, 4, v12')
    k.op('v_add_u32 v14, 2, v10')
    k.op('v_xor_b32 v14, v13, v14')
    k.op('v_lshl_add_u32 v5, v14, 4, v12')
    k.op('v_add_u32 v5, 512, v5')
    k.op('s_waitcnt lgkmcnt(0)')
    srd(k, 8, 4, XBYTES)
    srd(k, 12, 6, WS_BYTES)
    k.op(f's_mul_i32 s20, s17, {FRAME}')
    k.op(f's_mul_i32 s21, s18, {TILE}')
    k.op('s_add_u32 s21, s21, s20')
    k.op(f's_mul_i32 s22, s16, {TILE}')
    k.op('s_add_u32 s22, s22, s20')
    k.op(f's_add_u32 s22, s22, {H2}')
    k.op(f's_mov_b32 s24, {f32hex(8.0)}')
    k.op('s_mov_b32 s25, 0xff800000')
    MREF, L_ = 6, 7
    S_, P_, O_ = 16, 32, 40
    QA, KA, VA = 0, 96, 128
    KR, VR = 8, 8

    def dma(it, lo, hi):
        for sl in range(lo, hi, 2):
            ldsoff = (it % 2) * 16384 + sl * 2048 if sl < 8 else 32768 + (sl - 8) * 2048
            k.op(f's_add_u32 s26, s19, {ldsoff}')
            k.op('s_mov_b32 m0, s26')
            k.op(f's_add_u32 s27, s22, {it * 4 * TILE + sl * 2048}')
            for q in range(4):
                k.vmem(f'buffer_load_dwordx4 v1, s[12:15], s27 offen offset:{q * 1024} lds', ('kv', it, 0 if sl < 8 else 1))

    def slice_off(it, sl):
        return (it % 2) * 16384 + sl * 2048 if sl < 8 else 32768 + (sl - 8) * 2048

    dma(0, 0, 8)
    dma(0, 8, 12)
    k.op(f's_add_u32 s23, s21, {Q2}')
    for kc in range(24):
        if kc % 4 == 0:
            k.op(f's_add_u32 s26, s23, {kc * 1024}')
        k.vmem(f'buffer_load_dwordx4 {a(QA + 4 * kc, 4)}, v1, s[12:15], s26 offen offset:{(kc % 4) * 1024}', ('q', kc))
    k.op(f'v_mov_b32 {v(L_)}, 0')

    ct_order = [8, 9, 10, 11, 0, 1, 2, 3, 4, 5, 6, 7]

    for it in range(6):
        if it == 5:
            k.op('s_cmp_eq_u32 s16, 3')
            k.op('s_cbranch_scc1 K2_LOOPDONE')
        if it < 5:
            dma(it + 1, 0, 8)
        def kread(kc):
            k.ds(f'ds_read_b128 {a(KA + 4 * (kc % KR), 4)}, {v(2 + kc % 2)} offset:{slice_off(it, kc // 2)}', ('k', kc))
        k.wait_vm(('kv', it, 0))
        for kc in range(KR - 2):
            kread(kc)
        for kc in range(24):
            nk = kc + KR - 2
            if nk < 24:
                if nk == 16:
                    k.wait_vm(('kv', it, 1))
                kread(nk)
            if it == 0:
                k.wait_vm(('q', kc))
            k.wait_lg(('k', kc))
            c = '0' if kc == 0 else v(S_, 16)
            k.op(f'v_mfma_f32_32x32x16_bf16 {v(S_, 16)}, {a(KA + 4 * (kc % KR), 4)}, {a(QA + 4 * kc, 4)}, {c}')
        vlist = [(m, ct) for m in range(2) for ct in ct_order]

        def vread(j):
            m, ct = vlist[j]
            for p in range(2):
                k.ds(f'ds_read_b64_tr_b16 {a(VA + 4 * (j % VR) + 2 * p, 2)}, {v(4 + p)} '
                     f'offset:{slice_off(it, ct) + m * 1024}', ('v', j))
        for j in range(VR - 2):
            vread(j)
        if it == 5:
            k.op('s_cmp_lg_u32 s16, 2')
            k.op('s_cbranch_scc1 K2_NOMASK')
            snap = k.snapshot()
            for r in (13, 14, 15):
                k.op(f'v_mov_b32 {v(S_ + r)}, s25')
            k.op('s_mov_b32 exec_lo, 0')
            k.op(f'v_mov_b32 {v(S_ + 12)}, s25')
            k.op('s_mov_b32 exec_lo, -1')
            k.nop(4)
            k.label('K2_NOMASK')
            k.restore(snap)
        k.op(f'v_max3_f32 v11, {v(S_)}, {v(S_ + 1)}, {v(S_ + 2)}')
        k.op(f'v_max3_f32 v12, {v(S_ + 3)}, {v(S_ + 4)}, {v(S_ + 5)}')
        k.op(f'v_max3_f32 v11, v11, {v(S_ + 6)}, {v(S_ + 7)}')
        k.op(f'v_max3_f32 v12, v12, {v(S_ + 8)}, {v(S_ + 9)}')
        k.op(f'v_max3_f32 v11, v11, {v(S_ + 10)}, {v(S_ + 11)}')
        k.op(f'v_max3_f32 v12, v12, {v(S_ + 12)}, {v(S_ + 13)}')
        k.op(f'v_max3_f32 v11, v11, {v(S_ + 14)}, {v(S_ + 15)}')
        k.op('v_max_f32 v11, v11, v12')
        k.op('v_mov_b32 v12, v11')
        k.op('v_permlane32_swap_b32 v11, v12')
        k.op('v_max_f32 v11, v11, v12')
        if it == 0:
            k.op(f'v_mov_b32 {v(MREF)}, v11')
        else:
            lab = k.newlabel('K2_NORESC')
            k.op(f'v_sub_f32 v12, v11, {v(MREF)}')
            k.op('v_cmp_lt_f32 vcc, s24, v12')
            k.nop(2)
            k.op(f's_cbranch_vccz {lab}')
            snap = k.snapshot()
            k.op(f'v_max_f32 v11, v11, {v(MREF)}')
            k.op(f'v_sub_f32 v12, {v(MREF)}, v11')
            k.op('v_exp_f32 v12, v12')
            k.op(f'v_mov_b32 {v(MREF)}, v11')
            k.op(f'v_mul_f32 {v(L_)}, {v(L_)}, v12')
            for r in range(192):
                k.op(f'v_mul_f32 {v(O_ + r)}, {v(O_ + r)}, v12')
            k.nop(4)
            k.label(lab)
            k.restore(snap)

        def exps(lo):
            for r in range(lo, lo + 8):
                k.op(f'v_sub_f32 {v(S_ + r)}, {v(S_ + r)}, {v(MREF)}')
            for r in range(lo, lo + 8):
                k.op(f'v_exp_f32 {v(S_ + r)}, {v(S_ + r)}')
            for r in range(lo, lo + 8, 2):
                k.op(f'v_cvt_pk_bf16_f32 {v(P_ + r // 2)}, {v(S_ + r)}, {v(S_ + r + 1)}')

        def sums():
            k.op(f'v_add_f32 v11, {v(S_)}, {v(S_ + 1)}')
            k.op(f'v_add_f32 v12, {v(S_ + 2)}, {v(S_ + 3)}')
            for r in range(4, 16, 2):
                k.op(f'v_add_f32 v11, v11, {v(S_ + r)}')
                k.op(f'v_add_f32 v12, v12, {v(S_ + r + 1)}')
            k.op('v_add_f32 v11, v11, v12')
            k.op(f'v_add_f32 {v(L_)}, {v(L_)}, v11')

        exps(0)
        filler = []
        for r in range(8, 16):
            filler.append(f'v_sub_f32 {v(S_ + r)}, {v(S_ + r)}, {v(MREF)}')
        for r in range(8, 16):
            filler.append(f'v_exp_f32 {v(S_ + r)}, {v(S_ + r)}')
        for r in range(8, 16, 2):
            filler.append(f'v_cvt_pk_bf16_f32 {v(P_ + r // 2)}, {v(S_ + r)}, {v(S_ + r + 1)}')
        filler.append(f'v_add_f32 v11, {v(S_)}, {v(S_ + 1)}')
        filler.append(f'v_add_f32 v12, {v(S_ + 2)}, {v(S_ + 3)}')
        for r in range(4, 16, 2):
            filler.append(f'v_add_f32 v11, v11, {v(S_ + r)}')
            filler.append(f'v_add_f32 v12, v12, {v(S_ + r + 1)}')
        filler.append('v_add_f32 v11, v11, v12')
        filler.append(f'v_add_f32 {v(L_)}, {v(L_)}, v11')
        for j in range(24):
            m, ct = vlist[j]
            nj = j + VR - 2
            if nj < 24:
                vread(nj)
            if m == 1:
                while filler and len(filler) > 16:
                    k.op(filler.pop(0))
            k.wait_lg(('v', j))
            c = '0' if (it == 0 and m == 0) else v(O_ + 16 * ct, 16)
            k.op(f'v_mfma_f32_32x32x16_bf16 {v(O_ + 16 * ct, 16)}, {a(VA + 4 * (j % VR), 4)}, '
                 f'{v(P_ + 4 * m, 4)}, {c}')
            for _ in range(4):
                if filler:
                    k.op(filler.pop(0))
            if j == 15 and it < 5:
                dma(it + 1, 8, 12)
        while filler:
            k.op(filler.pop(0))
    k.nop(12)
    k.label('K2_LOOPDONE')
    k.nop(12)
    k.wait_vm_all()
    k.wait_lg_all()
    k.op(f'v_mov_b32 v12, {v(L_)}')
    k.op(f'v_permlane32_swap_b32 {v(L_)}, v12')
    k.op(f'v_add_f32 {v(L_)}, {v(L_)}, v12')
    LST = 147456
    k.op('v_lshlrev_b32 v11, 3, v9')
    k.op('s_lshl_b32 s26, s16, 8')
    k.op('v_add_u32 v12, s26, v11')
    k.op('s_barrier')
    k.op(f'v_add_u32 v12, {LST}, v12')
    k.op(f'v_add_u32 v11, {LST}, v11')
    k.ds(f'ds_write_b64 v12, {v(MREF, 2)}')
    RW = 48
    k.op('s_mul_i32 s28, s16, 73728')

    def wload(idx):
        if idx % 4 == 0:
            k.op(f's_add_u32 s29, s28, {W4 + idx * 1024}')
        k.vmem(f'buffer_load_dwordx4 {a(4 * (idx % RW), 4)}, v1, s[12:15], s29 offen offset:{(idx % 4) * 1024}',
               ('w', idx))
    k.op('s_mul_i32 s26, s16, 6144')
    k.op('s_add_u32 s26, s26, s21')
    k.op(f's_add_u32 s26, s26, {X1}')
    XR = 232
    for i in range(6):
        if i == 4:
            k.op('s_add_u32 s26, s26, 4096')
        k.vmem(f'buffer_load_dwordx4 {v(XR + 4 * i, 4)}, v1, s[12:15], s26 offen offset:{(i % 4) * 1024}', ('x1', i))
    for idx in range(RW):
        wload(idx)
    k.barrier()
    for w in range(4):
        k.ds(f'ds_read_b64 {v(S_ + 2 * w, 2)}, v11 offset:{256 * w}', 'st')
    k.wait_lg('st')
    k.op(f'v_max3_f32 v12, {v(S_)}, {v(S_ + 2)}, {v(S_ + 4)}')
    k.op(f'v_max_f32 v12, v12, {v(S_ + 6)}')
    for w in range(4):
        k.op(f'v_sub_f32 {v(S_ + 2 * w)}, {v(S_ + 2 * w)}, v12')
    for w in range(4):
        k.op(f'v_exp_f32 {v(S_ + 2 * w)}, {v(S_ + 2 * w)}')
    k.op(f'v_mul_f32 v13, {v(S_)}, {v(S_ + 1)}')
    for w in range(1, 4):
        k.op(f'v_fmac_f32 v13, {v(S_ + 2 * w)}, {v(S_ + 2 * w + 1)}')
    k.op('v_rcp_f32 v13, v13')
    k.op(f'v_sub_f32 v12, {v(MREF)}, v12')
    k.op('v_exp_f32 v12, v12')
    k.op('v_mul_f32 v12, v12, v13')
    for r in range(192):
        k.op(f'v_mul_f32 {v(O_ + r)}, {v(O_ + r)}, v12')
    for e in range(1, 4):
        k.op(f's_add_u32 s26, s16, {e}')
        k.op('s_and_b32 s26, s26, 3')
        k.op('s_mul_i32 s27, s26, 36864')
        k.op(f's_add_u32 s27, s27, {(e - 1) * 12288}')
        k.op('v_add_u32 v13, s27, v1')
        labs = [k.newlabel('K2_XW') for _ in range(4)]
        end = k.newlabel('K2_XE')
        for d in range(4):
            k.op(f's_cmp_eq_u32 s26, {d}')
            k.op(f's_cbranch_scc1 {labs[d]}')
        for d in range(4):
            k.label(labs[d])
            for c in range(3):
                for q in range(4):
                    k.op(f'ds_write_b128 v13, {v(O_ + 16 * (3 * d + c) + 4 * q, 4)} offset:{c * 4096 + q * 1024}')
            if d < 3:
                k.op(f's_branch {end}')
        k.label(end)
    k.barrier()
    ACC = 16
    k.op('s_mul_i32 s27, s16, 36864')
    k.op('v_add_u32 v13, s27, v1')
    labs = [k.newlabel('K2_RD') for _ in range(4)]
    end = k.newlabel('K2_RE')
    for d in range(4):
        k.op(f's_cmp_eq_u32 s16, {d}')
        k.op(f's_cbranch_scc1 {labs[d]}')
    snap0 = k.snapshot()
    PKR = 16
    for d in range(4):
        k.restore(snap0)
        k.label(labs[d])
        own = O_ + 48 * d
        others = [O_ + 48 * x for x in range(4) if x != d]
        for e in range(3):
            for i in range(12):
                k.op(f'ds_read_b128 {v(others[e] + 4 * i, 4)}, v13 offset:{e * 12288 + i * 1024}')
        k.op('s_waitcnt lgkmcnt(0)')
        for r in range(48):
            k.op(f'v_add_f32 {v(own + r)}, {v(own + r)}, {v(others[0] + r)}')
            k.op(f'v_add_f32 {v(others[1] + r)}, {v(others[1] + r)}, {v(others[2] + r)}')
        for r in range(48):
            k.op(f'v_add_f32 {v(own + r)}, {v(own + r)}, {v(others[1] + r)}')
        for j in range(24):
            k.op(f'v_cvt_pk_bf16_f32 {v(PKR + j)}, {v(own + 2 * j)}, {v(own + 2 * j + 1)}')
        k.nop(2)
        if d < 3:
            k.op(f's_branch {end}')
    k.label(end)
    k.op('s_barrier')
    k.op('s_mul_i32 s27, s16, 6144')
    k.op('v_add_u32 v13, s27, v1')
    for i in range(6):
        k.ds(f'ds_write_b128 v13, {v(PKR + 4 * i, 4)} offset:{1024 * i}')
    k.barrier()
    BF = 40
    for kc in range(24):
        k.ds(f'ds_read_b128 {v(BF + 4 * kc, 4)}, v1 offset:{1024 * kc}', ('b', kc))
    ACC = 136
    for jt in range(3):
        for kc in range(24):
            idx = jt * 24 + kc
            k.wait_vm(('w', idx))
            if jt == 0:
                k.wait_lg(('b', kc))
            c = '0' if kc == 0 else v(ACC + 16 * jt, 16)
            k.op(f'v_mfma_f32_32x32x16_bf16 {v(ACC + 16 * jt, 16)}, {a(4 * (idx % RW), 4)}, {v(BF + 4 * kc, 4)}, {c}')
            if idx + RW < 72:
                wload(idx + RW)
    k.op('s_lshl_b32 s26, s18, 5')
    k.op('v_add_u32 v11, s26, v9')
    k.op('s_movk_i32 s27, 729')
    k.op('v_cmp_gt_u32 vcc, s27, v11')
    k.op('s_mul_i32 s27, s17, 729')
    k.op('v_add_u32 v11, s27, v11')
    k.op('s_movk_i32 s27, 768')
    k.op('v_mul_lo_u32 v11, v11, s27')
    k.op('v_lshl_add_u32 v11, v10, 3, v11')
    k.op('s_mul_i32 s27, s16, 192')
    k.op('v_add_u32 v11, s27, v11')
    k.op(f'v_mov_b32 v12, {BIG}')
    k.op('v_cndmask_b32 v11, v12, v11, vcc')
    k.op('s_mov_b32 s27, 0xffff0000')
    k.wait_vm(('x1', 5))
    for j in range(24):
        k.op(f'v_lshlrev_b32 v12, 16, {v(XR + j)}')
        k.op(f'v_and_b32 v13, s27, {v(XR + j)}')
        k.op(f'v_add_f32 v12, v12, {v(ACC + 2 * j)}')
        k.op(f'v_add_f32 v13, v13, {v(ACC + 2 * j + 1)}')
        k.op(f'v_cvt_pk_bf16_f32 {v(PKR + j)}, v12, v13')
    for i in range(6):
        for h in range(2):
            k.op(f'buffer_store_dwordx2 {v(PKR + 4 * i + 2 * h, 2)}, v11, s[8:11], 0 offen offset:{32 * i + 16 * h}')
    k.label('K2_END')
    k.op('s_endpgm')
    return k.text(), descriptor('spatial_kernel', 512, 256, 48)


def main():
    out = []
    out.append('; @launch kernel=fold_kernel grid=(144,1,1) block=(256,1,1) lds=98304')
    out.append(f'; @launch kernel=temporal_kernel grid=(183,1,1) block=(256,1,1) lds={K1_LDS}')
    out.append(f'; @launch kernel=spatial_kernel grid=(184,1,1) block=(256,1,1) lds={K2_LDS}')
    out.append('.amdgcn_target "amdgcn-amd-amdhsa--gfx950"')
    out.append('.text')
    descs = []
    for g in (gen_k0, gen_k1, gen_k2):
        t, d = g()
        out.append(t)
        descs.append(d)
    out.append('.section .rodata,"a"')
    for d in descs:
        out.append('.p2align 6')
        out.append(d)
    open(sys.argv[1], 'w').write('\n'.join(out) + '\n')


if __name__ == '__main__':
    main()
```

```python
import re, copy, contextlib

_REG = re.compile(r'^([vas])(\d+)$')
_RNG = re.compile(r'^([vas])\[(\d+):(\d+)\]$')
TRANS = ('v_exp_f32', 'v_log_f32', 'v_rcp_f32', 'v_rsq_f32', 'v_sqrt_f32', 'v_sin_f32', 'v_cos_f32')


def regs_of(tok):
    tok = tok.strip()
    if tok.startswith('-'):
        tok = tok[1:]
    m = re.match(r'^abs\((.*)\)$', tok)
    if m:
        tok = m.group(1)
    m = _REG.match(tok)
    if m:
        return [m.group(1) + m.group(2)]
    m = _RNG.match(tok)
    if m:
        return [m.group(1) + str(i) for i in range(int(m.group(2)), int(m.group(3)) + 1)]
    if tok == 'vcc':
        return ['vcc']
    if tok == 'exec':
        return ['exec']
    if tok == 'm0':
        return ['m0']
    return []


def v(i, n=1):
    return f'v{i}' if n == 1 else f'v[{i}:{i + n - 1}]'


def a(i, n=1):
    return f'a{i}' if n == 1 else f'a[{i}:{i + n - 1}]'


def s(i, n=1):
    return f's{i}' if n == 1 else f's[{i}:{i + n - 1}]'


class K:
    def __init__(self):
        self.out = []
        self.t = 0
        self.valu_w = {}
        self.trans_w = {}
        self.mfma_w = {}
        self.mfma_c = {}
        self.sgpr_w = {}
        self.store_r = {}
        self.m0_w = -100
        self.vm = []
        self.lg = []
        self.nlabel = 0
        self.dot_w = {}
        self.clk = 0
        self.bg = []
        self.bg_period = 60
        self.bg_next = 0
        self._in_bg = False
        self.hold = 0

    def raw(self, text):
        self.out.append(text)

    def comment(self, text):
        self.out.append('    ; ' + text)

    def label(self, name):
        self.out.append(name + ':')

    def newlabel(self, p='L'):
        self.nlabel += 1
        return f'{p}_{self.nlabel}'

    def nop(self, n):
        while n > 0:
            k = min(n, 16)
            self.out.append(f'    s_nop {k - 1}')
            self.t += k
            self.clk += 4 * k
            n -= k

    def snapshot(self):
        return copy.deepcopy((self.t, self.valu_w, self.trans_w, self.mfma_w, self.mfma_c, self.sgpr_w,
                              self.store_r, self.m0_w, self.dot_w))

    def restore(self, snap):
        (self.t, self.valu_w, self.trans_w, self.mfma_w, self.mfma_c, self.sgpr_w, self.store_r,
         self.m0_w, self.dot_w) = copy.deepcopy(snap)

    def op(self, text):
        t0 = text.strip()
        mn, _, rest = t0.partition(' ')
        ops = [o.strip() for o in rest.split(',')] if rest else []
        toks = []
        for o in ops:
            toks.append(o.split()[0] if o else o)
        mods = rest
        is_mfma = mn.startswith('v_mfma')
        is_valu = mn.startswith('v_') and not is_mfma
        is_ds = mn.startswith('ds_')
        is_vmem = mn.startswith('buffer_') or mn.startswith('global_')
        is_trans = mn.replace('_e32', '').replace('_e64', '') in TRANS
        dst, src = [], []
        if is_mfma:
            dst = regs_of(toks[0])
            srcA = regs_of(toks[1]); srcB = regs_of(toks[2]); srcC = regs_of(toks[3])
            src = srcA + srcB + srcC
        elif is_valu:
            if mn.startswith('v_permlane'):
                dst = regs_of(toks[0]) + regs_of(toks[1]); src = list(dst)
            else:
                dst = regs_of(toks[0])
                for x in toks[1:]:
                    src += regs_of(x)
                if mn.startswith('v_fmac') or mn.startswith('v_pk_fmac') or mn.startswith('v_dot2c'):
                    src += dst
                if mn.startswith('v_cndmask') and len(toks) == 3:
                    src += ['vcc']
        elif is_ds:
            if mn.startswith('ds_read') or mn.startswith('ds_bpermute') or mn.startswith('ds_swizzle'):
                dst = regs_of(toks[0])
                for x in toks[1:]:
                    src += regs_of(x)
            else:
                for x in toks:
                    src += regs_of(x)
        elif is_vmem:
            lds = re.search(r'\blds\b', mods) is not None
            if 'load' in mn and not lds:
                dst = regs_of(toks[0])
                for x in toks[1:]:
                    src += regs_of(x)
            else:
                for x in toks:
                    src += regs_of(x)
        else:
            if toks:
                dst = regs_of(toks[0])
                for x in toks[1:]:
                    src += regs_of(x)

        need = self.t

        def req(x):
            nonlocal need
            if x > need:
                need = x

        if is_mfma:
            N = 12 if '32x32' in mn else 8
            for r in src:
                if r in self.valu_w:
                    req(self.valu_w[r] + 3)
            for r in srcA + srcB:
                if r in self.mfma_w:
                    p, n, _, _ = self.mfma_w[r]
                    req(p + n + 1)
            for r in srcC:
                if r in self.mfma_w:
                    p, n, f, sz = self.mfma_w[r]
                    if not (f == srcC[0] and sz == len(srcC) and n == N):
                        req(p + n - 2 + 1)
            for r in dst:
                if r in self.mfma_w and r not in srcC:
                    p, n, f, sz = self.mfma_w[r]
                    req(p + n + 1)
        elif is_valu or is_ds or is_vmem:
            for r in src + dst:
                if r in self.mfma_w:
                    p, n, _, _ = self.mfma_w[r]
                    req(p + n + 1)
            if is_valu:
                for r in dst:
                    if r in self.mfma_c:
                        p, n = self.mfma_c[r]
                        req(p + n + 1)
                    if r in self.store_r:
                        req(self.store_r[r] + 3)
                if not is_trans:
                    for r in src:
                        if r in self.trans_w:
                            req(self.trans_w[r] + 2)
                if mn.startswith('v_permlane'):
                    for r in src:
                        if r in self.valu_w:
                            req(self.valu_w[r] + 3)
                if mn.startswith('v_readfirstlane') or mn.startswith('v_readlane'):
                    for r in src:
                        if r in self.valu_w:
                            req(self.valu_w[r] + 2)
                for r in src:
                    if r in self.sgpr_w:
                        req(self.sgpr_w[r] + 3)
            else:
                for r in src:
                    if r in self.sgpr_w:
                        req(self.sgpr_w[r] + 6)
                for r in dst:
                    if r in self.store_r:
                        req(self.store_r[r] + 2)
                if is_vmem and re.search(r'\blds\b', mods):
                    req(self.m0_w + 2)
        else:
            for r in src:
                if r in self.sgpr_w:
                    req(self.sgpr_w[r] + 2)
        is_dot = mn.startswith('v_dot')
        for r in src + dst:
            if r in self.dot_w:
                if is_dot and r in dst and r not in [x for tk in toks[1:3] for x in regs_of(tk)]:
                    pass
                else:
                    req(self.dot_w[r] + 4)
        if need > self.t:
            self.nop(need - self.t)
        self.out.append('    ' + t0)
        now = self.t
        self.t += 1
        self.clk += 32 if is_mfma else (8 if is_trans else 4)
        for r in dst:
            self.dot_w.pop(r, None)
        if is_dot:
            for r in dst:
                self.dot_w[r] = now
        if is_mfma:
            N = 12 if '32x32' in mn else 8
            for r in dst:
                self.mfma_w[r] = (now, N, dst[0], len(dst))
                self.valu_w.pop(r, None); self.trans_w.pop(r, None)
            for r in srcC:
                self.mfma_c[r] = (now, 7 if N == 12 else 3)
        elif is_valu:
            for r in dst:
                if r[0] in 'va' and r not in ('vcc',):
                    self.valu_w[r] = now
                    self.mfma_w.pop(r, None)
                    if is_trans:
                        self.trans_w[r] = now
                    else:
                        self.trans_w.pop(r, None)
                else:
                    self.sgpr_w[r] = now
        elif is_ds or is_vmem:
            for r in dst:
                self.valu_w.pop(r, None); self.trans_w.pop(r, None); self.mfma_w.pop(r, None)
            if is_vmem and 'store' in mn and ('x4' in mn or 'x3' in mn):
                for r in regs_of(toks[0]):
                    self.store_r[r] = now
        else:
            for r in dst:
                if r == 'm0':
                    self.m0_w = now
                self.sgpr_w.pop(r, None)

        if self.bg and not self._in_bg and not self.hold and self.clk >= self.bg_next:
            self.bg_issue()

    @contextlib.contextmanager
    def nobg(self):
        self.hold += 1
        try:
            yield
        finally:
            self.hold -= 1

    def bg_issue(self, n=1):
        for _ in range(n):
            if not self.bg:
                return
            tag, fn = self.bg.pop(0)
            self._in_bg = True
            fn()
            self._in_bg = False
            self.bg_next = self.clk + self.bg_period

    def bg_flush_to(self, tag):
        while any(t == tag for t, _ in self.bg):
            self.bg_issue()

    def bg_flush(self):
        while self.bg:
            self.bg_issue()

    def vmem(self, text, tag=None):
        self.op(text)
        self.vm.append(tag)

    def ds(self, text, tag=None):
        self.op(text)
        self.lg.append(tag)

    def wait_vm(self, tag):
        self.bg_flush_to(tag)
        idx = max((i for i, t in enumerate(self.vm) if t == tag), default=None)
        if idx is None:
            return
        n = len(self.vm) - 1 - idx
        self.op(f's_waitcnt vmcnt({min(n, 63)})')
        self.vm = self.vm[idx + 1:] if n <= 63 else self.vm[len(self.vm) - 63:]

    def wait_lg(self, tag):
        idx = max((i for i, t in enumerate(self.lg) if t == tag), default=None)
        if idx is None:
            return
        n = len(self.lg) - 1 - idx
        self.op(f's_waitcnt lgkmcnt({min(n, 15)})')
        self.lg = self.lg[idx + 1:] if n <= 15 else self.lg[len(self.lg) - 15:]

    def wait_vm_all(self):
        self.op('s_waitcnt vmcnt(0)')
        self.vm = []

    def wait_lg_all(self):
        self.op('s_waitcnt lgkmcnt(0)')
        self.lg = []

    def barrier(self):
        self.op('s_waitcnt lgkmcnt(0)')
        self.lg = []
        self.op('s_barrier')

    def text(self):
        return '\n'.join(self.out)
```

```python
import sys, os, struct
sys.path.insert(0, os.path.dirname(__file__))
from asmlib import K, v, a, s

T, N, C = 7, 729, 384
W1, W2, W3, W4 = 0, 0x48000, 0x90000, 0xD8000
H2, Q2, X1 = 0x200000, 0x600000, 0xA00000
TILE = 24576
FRAME = 23 * TILE
XBYTES = T * N * C * 2
WS_BYTES = 0x10000000
BIG = 0x7F000000
SCALE_LOG2E = (C ** -0.5) * 1.4426950408889634
STAMP = os.environ.get('STAMP', '0') == '1'


def f32hex(x):
    return '0x%08x' % struct.unpack('<I', struct.pack('<f', x))[0]


def srd(k, base, ptr, nbytes):
    k.op(f's_mov_b32 s{base}, s{ptr}')
    k.op(f's_and_b32 s{base + 1}, s{ptr + 1}, 0xffff')
    k.op(f's_mov_b32 s{base + 2}, {nbytes}')
    k.op(f's_mov_b32 s{base + 3}, 0x00020000')


def stamp_init(k, lastwg=182):
    if not STAMP:
        return
    with k.nobg():
        k.op('s_load_dwordx2 s[60:61], s[0:1], 48')
        k.op('s_waitcnt lgkmcnt(0)')
        k.lg = []
        srd(k, 64, 60, 256)
        k.op('s_mov_b32 s70, 0x1000')
        k.op('s_or_b32 s69, s2, s16')
        k.op('s_cmp_eq_u32 s69, 0')
        k.op('s_cselect_b32 s70, 0, s70')
        k.op(f's_xor_b32 s69, s2, {lastwg}')
        k.op('s_or_b32 s69, s69, s16')
        k.op('s_cmp_eq_u32 s69, 0')
        k.op('s_cselect_b32 s70, 128, s70')


def stamp(k, idx, r0=254, r1=255, real=False):
    if not STAMP:
        return
    with k.nobg():
        k.op('s_waitcnt lgkmcnt(0)')
        k.lg = []
        k.op('s_memrealtime s[62:63]' if real else 's_memtime s[62:63]')
        k.op('s_waitcnt lgkmcnt(0)')
        k.op(f's_add_u32 s69, s70, {4 * idx}')
        k.op(f'v_mov_b32 v{r1}, s62')
        k.op(f'v_mov_b32 v{r0}, s69')
        k.vmem(f'buffer_store_dword v{r1}, v{r0}, s[64:67], 0 offen')


def header(k, name):
    k.raw(f'.globl {name}')
    k.raw('.p2align 8')
    k.raw(f'.type {name},@function')
    k.raw(f'{name}:')


def descriptor(name, nvgpr, accum, nsgpr):
    return f'''.amdhsa_kernel {name}
  .amdhsa_next_free_vgpr {nvgpr}
  .amdhsa_next_free_sgpr {nsgpr}
  .amdhsa_accum_offset {accum}
  .amdhsa_group_segment_fixed_size 0
  .amdhsa_kernarg_size 64
  .amdhsa_user_sgpr_count 2
  .amdhsa_user_sgpr_kernarg_segment_ptr 1
  .amdhsa_system_sgpr_workgroup_id_x 1
  .amdhsa_float_denorm_mode_32 3
.end_amdhsa_kernel'''


K0_LDS = 98304


def gen_k0():
    k = K()
    header(k, 'fold_kernel')
    k.op('s_cmp_ge_u32 s2, 144')
    k.op('s_cbranch_scc1 K0_END')
    k.op('s_load_dwordx4 s[4:7], s[0:1], 8')
    k.op('s_load_dwordx4 s[8:11], s[0:1], 24')
    k.op('s_load_dwordx2 s[12:13], s[0:1], 56')
    k.op('v_lshrrev_b32 v1, 6, v0')
    k.op('v_readfirstlane_b32 s16, v1')
    k.op('v_and_b32 v1, 63, v0')
    k.op('s_mul_hi_u32 s14, s2, 0x071C71C8')
    k.op('s_mul_i32 s15, s14, 36')
    k.op('s_sub_u32 s15, s2, s15')
    k.op('s_mul_hi_u32 s17, s15, 0x2AAAAAAB')
    k.op('s_mul_i32 s18, s17, 6')
    k.op('s_sub_u32 s18, s15, s18')
    k.op('s_and_b32 s19, s14, 1')
    k.op('s_waitcnt lgkmcnt(0)')
    k.op('s_cmp_lt_u32 s14, 2')
    k.op('s_cselect_b32 s20, s4, s8')
    k.op('s_cselect_b32 s21, s5, s9')
    k.op('s_cselect_b32 s22, s6, s10')
    k.op('s_cselect_b32 s23, s7, s11')
    srd(k, 24, 20, C * 3 * C * 2)
    srd(k, 28, 22, C * C * 2)
    srd(k, 32, 12, WS_BYTES)
    k.op('s_mul_i32 s36, s16, 768')
    k.op('s_lshl_b32 s37, s17, 6')
    k.op('s_mul_i32 s37, s37, 2304')
    k.op('s_mul_i32 s38, s19, 1536')
    k.op('s_add_u32 s37, s37, s38')
    k.op('s_lshl_b32 s38, s18, 6')
    k.op('s_mul_i32 s38, s38, 2304')
    k.op('s_add_u32 s38, s38, 768')
    k.op('s_mov_b32 s39, 0x05555556')
    k.op('s_movk_i32 s40, 2304')
    k.op('s_mul_i32 s41, s16, 12288')
    for u in range(12):
        k.op(f'v_add_u32 v2, s36, v1')
        if u:
            k.op(f'v_add_u32 v2, {64 * u}, v2')
        k.op('v_mul_hi_u32 v3, v2, s39')
        k.op('v_mul_u32_u24 v4, 48, v3')
        k.op('v_sub_u32 v4, v2, v4')
        k.op('v_xor_b32 v5, v4, v3')
        k.op('v_and_b32 v5, 15, v5')
        k.op('v_and_b32 v4, 48, v4')
        k.op('v_or_b32 v4, v4, v5')
        k.op('v_mul_lo_u32 v3, v3, s40')
        k.op(f'v_lshl_add_u32 {v(16 + u)}, v4, 4, v3')
    for u in range(12):
        k.op(f's_add_u32 s42, s41, {u * 1024}')
        k.op('s_mov_b32 m0, s42')
        k.op(f'buffer_load_dwordx4 {v(16 + u)}, s[24:27], s37 offen lds')
    k.op('s_cmp_eq_u32 s19, 1')
    k.op('s_cbranch_scc1 K0_VO')
    for u in range(12):
        k.op(f's_add_u32 s42, s41, {49152 + u * 1024}')
        k.op('s_mov_b32 m0, s42')
        k.op(f'buffer_load_dwordx4 {v(16 + u)}, s[24:27], s38 offen lds')
    k.op('s_branch K0_ST')
    k.label('K0_VO')
    k.op('v_lshrrev_b32 v2, 3, v1')
    k.op('v_mul_u32_u24 v2, 768, v2')
    k.op('v_and_b32 v3, 7, v1')
    k.op('v_lshl_add_u32 v2, v3, 4, v2')
    k.op('s_lshl_b32 s43, s18, 7')
    k.op('s_mul_i32 s44, s16, 73728')
    k.op('s_add_u32 s43, s43, s44')
    for u in range(12):
        k.op(f's_add_u32 s42, s41, {49152 + u * 1024}')
        k.op('s_mov_b32 m0, s42')
        k.op(f's_add_u32 s44, s43, {u * 6144}')
        k.op('buffer_load_dwordx4 v2, s[28:31], s44 offen lds')
    k.label('K0_ST')
    k.op('s_cmp_ge_u32 s2, 14')
    k.op('s_cbranch_scc1 K0_NOZERO')
    k.op('s_lshr_b32 s36, s2, 1')
    k.op('s_and_b32 s37, s2, 1')
    k.op('s_lshl_b32 s37, s37, 12')
    k.op(f's_mul_i32 s38, s36, {FRAME}')
    k.op(f's_add_u32 s38, s38, {H2 + 729 * 768}')
    k.op('v_lshlrev_b32 v2, 4, v0')
    k.op('v_add_u32 v2, s37, v2')
    k.op('s_movk_i32 s39, 5376')
    k.op('v_cmp_gt_u32 vcc, s39, v2')
    k.op(f'v_mov_b32 v3, {BIG}')
    k.op('v_cndmask_b32 v2, v3, v2, vcc')
    k.op('v_mov_b32 v4, 0')
    k.op('v_mov_b32 v5, 0')
    k.op('v_mov_b32 v6, 0')
    k.op('v_mov_b32 v7, 0')
    k.op('buffer_store_dwordx4 v[4:7], v2, s[32:35], s38 offen sc1')
    k.label('K0_NOZERO')
    k.nop(3)
    k.op('s_lshr_b32 s45, s16, 1')
    k.op('s_and_b32 s46, s16, 1')
    k.op('v_and_b32 v2, 31, v1')
    k.op('v_lshrrev_b32 v3, 5, v1')
    k.op('s_lshl_b32 s47, s45, 5')
    k.op('v_add_u32 v4, s47, v2')
    k.op('v_xor_b32 v5, v3, v4')
    k.op('v_and_b32 v5, 15, v5')
    k.op('v_mul_u32_u24 v4, 768, v4')
    for e in range(8):
        k.op(f'v_xor_b32 v6, {2 * e}, v5')
        k.op(f'v_lshl_add_u32 {v(32 + e)}, v6, 4, v4')
    k.op('s_lshl_b32 s47, s46, 5')
    k.op('v_add_u32 v4, s47, v2')
    k.op('v_xor_b32 v5, v3, v4')
    k.op('v_and_b32 v5, 15, v5')
    k.op('v_mul_u32_u24 v4, 768, v4')
    k.op('v_add_u32 v4, 49152, v4')
    for e in range(8):
        k.op(f'v_xor_b32 v6, {2 * e}, v5')
        k.op(f'v_lshl_add_u32 {v(40 + e)}, v6, 4, v4')
    k.op('v_and_b32 v6, 15, v1')
    k.op('v_lshrrev_b32 v7, 2, v6')
    k.op('v_lshl_add_u32 v7, v3, 3, v7')
    k.op('v_lshlrev_b32 v7, 7, v7')
    k.op('v_and_b32 v8, 3, v6')
    k.op('v_lshl_add_u32 v7, v8, 3, v7')
    k.op('v_bfe_u32 v8, v1, 4, 1')
    k.op('v_lshl_add_u32 v7, v8, 5, v7')
    k.op('s_lshl_b32 s47, s46, 6')
    k.op('s_add_u32 s47, s47, 49152')
    k.op('v_add_u32 v7, s47, v7')
    k.op('s_waitcnt vmcnt(0)')
    k.op('s_barrier')
    AF, BF, D = 48, 144, 240
    for cc in range(24):
        k.op(f'ds_read_b128 {v(AF + 4 * cc, 4)}, {v(32 + cc % 8)} offset:{(cc // 8) * 256}')
    k.op('s_cmp_eq_u32 s19, 1')
    k.op('s_cbranch_scc1 K0_VO2')
    for cc in range(24):
        k.op(f'ds_read_b128 {v(BF + 4 * cc, 4)}, {v(40 + cc % 8)} offset:{(cc // 8) * 256}')
    k.op(f's_mov_b32 s40, {f32hex(SCALE_LOG2E)}')
    k.op('s_branch K0_MM')
    k.label('K0_VO2')
    for cc in range(24):
        for p in range(2):
            k.op(f'ds_read_b64_tr_b16 {v(BF + 4 * cc + 2 * p, 2)}, v7 offset:{cc * 2048 + p * 512}')
    k.op('s_mov_b32 s40, 1.0')
    k.label('K0_MM')
    k.op('s_waitcnt lgkmcnt(0)')
    for cc in range(24):
        c = '0' if cc == 0 else v(D, 16)
        k.op(f'v_mfma_f32_32x32x16_bf16 {v(D, 16)}, {v(AF + 4 * cc, 4)}, {v(BF + 4 * cc, 4)}, {c}')
    for r in range(16):
        k.op(f'v_mul_f32 {v(D + r)}, s40, {v(D + r)}')
    for r in range(8):
        k.op(f'v_cvt_pk_bf16_f32 {v(8 + r)}, {v(D + 2 * r)}, {v(D + 2 * r + 1)}')
    k.op(f's_mul_i32 s36, s14, {W2}')
    k.op('s_lshl_b32 s37, s18, 1')
    k.op('s_add_u32 s37, s37, s46')
    k.op('s_mul_i32 s37, s37, 24')
    k.op('s_lshl_b32 s38, s17, 1')
    k.op('s_add_u32 s38, s38, s45')
    k.op('s_lshl_b32 s38, s38, 1')
    k.op('s_add_u32 s37, s37, s38')
    k.op('s_lshl_b32 s37, s37, 10')
    k.op('s_add_u32 s36, s36, s37')
    k.op('v_lshlrev_b32 v2, 4, v1')
    k.op('buffer_store_dwordx4 v[8:11], v2, s[32:35], s36 offen sc1')
    k.op('buffer_store_dwordx4 v[12:15], v2, s[32:35], s36 offen offset:1024 sc1')
    k.label('K0_END')
    k.op('s_endpgm')
    return k.text(), descriptor('fold_kernel', 256, 256, 56)


LH, LO_, LH2, LSP, LST1, LST2 = 0, 24576, 0, 49152, 0, 1024
STA, STB, STC = 0, 25088, 50176
K1_LDS = 67584 + 3 * 25088
RING = 60
LOOKAHEAD = 16
BURST = 6


def gen_k1():
    k = K()
    header(k, 'temporal_kernel')
    k.op('s_cmp_ge_u32 s2, 183')
    k.op('s_cbranch_scc1 K1_END')
    k.op('s_load_dwordx2 s[4:5], s[0:1], 0')
    k.op('s_load_dwordx2 s[6:7], s[0:1], 56')
    k.op('v_lshrrev_b32 v1, 6, v0')
    k.op('v_readfirstlane_b32 s16, v1')
    stamp_init(k, 182)
    stamp(k, 14, real=True)
    stamp(k, 12)
    k.op('v_and_b32 v10, 63, v0')
    k.op('v_lshlrev_b32 v1, 4, v10')
    k.op('v_and_b32 v11, 31, v10')
    k.op('v_lshrrev_b32 v12, 5, v10')
    k.op('v_lshrrev_b32 v13, 3, v11')
    k.op('v_and_b32 v14, 7, v11')
    k.op('s_lshl_b32 s18, s2, 2')
    k.op('v_add_u32 v15, s18, v13')
    k.op('v_cmp_gt_u32 s[30:31], 7, v14')
    k.op('s_movk_i32 s19, 729')
    k.op('v_cmp_gt_u32 s[32:33], s19, v15')
    k.op('s_and_b64 s[30:31], s[30:31], s[32:33]')
    k.op('v_mul_lo_u32 v2, v14, s19')
    k.op('v_add_u32 v2, v2, v15')
    k.op('s_movk_i32 s19, 768')
    k.op('v_mul_lo_u32 v2, v2, s19')
    k.op('v_lshl_add_u32 v2, v12, 3, v2')
    k.op('s_mul_i32 s19, s16, 192')
    k.op('v_add_u32 v2, s19, v2')
    k.op(f'v_mov_b32 v248, {BIG}')
    k.op('v_cndmask_b32 v2, v248, v2, s[30:31]')
    k.op('s_mul_i32 s17, s16, 73728')
    k.op('s_waitcnt lgkmcnt(0)')
    srd(k, 8, 4, XBYTES)
    srd(k, 12, 6, WS_BYTES)
    XF, ACC, PK, BF, S_ = 16, 64, 112, 136, 232
    GA = 13
    for i in range(6):
        for h in range(2):
            k.vmem(f'buffer_load_dwordx2 {v(PK + 4 * i + 2 * h, 2)}, v2, s[8:11], 0 offen offset:{32 * i + 16 * h}',
                   ('x', i, h))
    segs = [W1, W2, W3]

    def wload(idx):
        seg, kk = idx // 72, idx % 72
        if kk % 4 == 0:
            k.op(f's_add_u32 s18, s17, {segs[seg] + kk * 1024}')
        k.vmem(f'buffer_load_dwordx4 {a(4 * (idx % RING), 4)}, v1, s[12:15], s18 offen offset:{(kk % 4) * 1024}',
               ('w', idx))

    def wq(idx):
        k.bg.append((('w', idx), lambda: wload(idx)))

    for idx in range(RING):
        wq(idx)
    k.bg_issue(12)

    with k.nobg():
        for g in range(4):
            k.op(f'v_cmp_eq_u32 s[{20 + 2 * g}:{21 + 2 * g}], {g}, v13')
    k.op('v_mul_u32_u24 v3, 784, v11')
    k.op('v_add_u32 v3, 0x10800, v3')
    k.op('s_mul_i32 s19, s16, 192')
    k.op('v_add_u32 v3, s19, v3')
    k.op('v_lshl_add_u32 v4, v12, 3, v3')
    k.op('v_lshl_add_u32 v3, v12, 4, v3')
    k.op('v_lshrrev_b32 v249, 3, v10')
    k.op('v_and_b32 v250, 7, v10')
    k.op('s_lshl_b32 s19, s16, 3')
    k.op('v_add_u32 v251, s19, v249')
    k.op('v_mul_u32_u24 v5, 784, v251')
    k.op('v_lshl_add_u32 v5, v250, 4, v5')
    k.op('v_add_u32 v5, 0x10800, v5')
    k.op('s_lshl_b32 s42, s2, 2')
    k.op('s_add_u32 s42, s42, s16')
    k.op('s_and_b32 s43, s42, 3')
    k.op('s_lshl_b32 s43, s43, 2')
    k.op('s_bfe_u32 s44, s42, 0x20002')
    k.op('s_or_b32 s43, s43, s44')
    k.op(f'v_mul_u32_u24 v253, {736 * 768 // 256}, v249')
    k.op('v_lshlrev_b32 v253, 8, v253')
    k.op('s_mul_i32 s44, s42, 768')
    k.op('v_add_u32 v253, s44, v253')
    with k.nobg():
        k.op('v_cmp_gt_u32 s[32:33], 7, v249')
        k.op('s_cmp_lt_u32 s42, 729')
        k.op('s_cselect_b64 s[32:33], s[32:33], 0')
    k.op('v_cndmask_b32 v253, v248, v253, s[32:33]')
    k.op('v_lshl_add_u32 v13, v250, 4, v253')
    k.op('v_xor_b32 v251, s43, v250')
    k.op('v_lshl_add_u32 v14, v251, 4, v253')
    k.op('v_xor_b32 v251, 8, v251')
    k.op('v_lshl_add_u32 v15, v251, 4, v253')
    k.op('v_lshlrev_b32 v7, 3, v11')
    k.op('v_add_u32 v7, 0x10000, v7')
    k.op('s_lshl_b32 s19, s16, 8')
    k.op('v_add_u32 v6, s19, v7')
    k.op('v_and_b32 v249, 15, v10')
    k.op('v_lshrrev_b32 v250, 2, v249')
    k.op('v_lshl_add_u32 v250, v12, 2, v250')
    k.op('v_lshlrev_b32 v8, 4, v250')
    k.op('v_bfe_u32 v250, v10, 4, 1')
    k.op('v_lshl_add_u32 v8, v250, 10, v8')
    k.op('v_and_b32 v250, 1, v249')
    k.op('v_lshl_add_u32 v8, v250, 9, v8')
    k.op('v_bfe_u32 v250, v249, 1, 1')
    k.op('v_lshl_add_u32 v8, v250, 3, v8')
    k.op('s_mul_i32 s19, s16, 6144')
    k.op('v_add_u32 v8, s19, v8')
    k.op('v_add_u32 v9, s19, v1')
    k.op('s_mov_b32 s28, 0')
    k.op('s_mov_b32 s29, -1')
    k.op('s_mov_b32 s34, 0xffff0000')
    k.op('s_mov_b32 s35, 0x3f803f80')
    k.op(f's_mov_b32 s36, {f32hex(1.0 / 384)}')
    k.op(f's_mov_b32 s37, {f32hex(1e-5)}')
    k.op('s_mov_b32 s40, 0xff800000')

    def unpack():
        for j in range(24):
            k.op(f'v_lshlrev_b32 {v(XF + 2 * j)}, 16, {v(PK + j)}')
            k.op(f'v_and_b32 {v(XF + 2 * j + 1)}, s34, {v(PK + j)}')

    def xhalf_sum(r, tmp):
        k.op(f'v_mov_b32 {v(tmp)}, {v(r)}')
        k.op(f'v_permlane32_swap_b32 {v(r)}, {v(tmp)}')
        k.op(f'v_add_f32 {v(r)}, {v(r)}, {v(tmp)}')

    def ln_stats(st):
        for c in range(4):
            k.op(f'v_mov_b32 {v(248 + c)}, 0')
        for j in range(24):
            c = j % 2
            k.op(f'v_dot2c_f32_bf16 {v(248 + c)}, s35, {v(PK + j)}')
            k.op(f'v_dot2c_f32_bf16 {v(250 + c)}, {v(PK + j)}, {v(PK + j)}')
        k.op('v_add_f32 v248, v248, v249')
        k.op('v_add_f32 v249, v250, v251')
        k.op('v_mov_b32 v250, v248')
        k.op('v_mov_b32 v251, v249')
        k.op('v_permlane32_swap_b32 v248, v250')
        k.op('v_permlane32_swap_b32 v249, v251')
        k.op('v_add_f32 v248, v248, v250')
        k.op('v_add_f32 v249, v249, v251')
        k.ds(f'ds_write_b64 v6, v[248:249] offset:{st}')
        k.bg_issue(BURST)
        k.barrier()
        for w in range(4):
            k.ds(f'ds_read_b64 {v(S_ + 2 * w, 2)}, v7 offset:{st + 256 * w}', 'st')

    def ln_apply(src):
        k.wait_lg('st')
        k.op(f'v_pk_add_f32 v[248:249], {v(S_, 2)}, {v(S_ + 2, 2)}')
        k.op(f'v_pk_add_f32 v[250:251], {v(S_ + 4, 2)}, {v(S_ + 6, 2)}')
        k.op('v_pk_add_f32 v[248:249], v[248:249], v[250:251]')
        k.op('v_mul_f32 v248, s36, v248')
        k.op('v_mul_f32 v249, s36, v249')
        k.op('v_fma_f32 v249, -v248, v248, v249')
        k.op('v_max_f32 v249, 0, v249')
        k.op('v_add_f32 v249, s37, v249')
        k.op('v_rsq_f32 v250, v249')
        k.op('v_mul_f32 v252, v248, v250')
        for j in range(24):
            tp = 254 if j % 2 else 248
            k.op(f'v_pk_fma_f32 {v(tp, 2)}, {v(src + 2 * j, 2)}, v[250:251], v[252:253] '
                 f'op_sel_hi:[1,0,0] neg_lo:[0,0,1] neg_hi:[0,0,1]')
            k.op(f'v_cvt_pk_bf16_f32 {v(PK + j)}, {v(tp)}, {v(tp + 1)}')

    def share(region):
        for i in range(6):
            k.ds(f'ds_write_b128 v9, {v(PK + 4 * i, 4)} offset:{region + 1024 * i}')
        k.bg_issue(BURST)
        k.barrier()
        for kc in range(24):
            k.ds(f'ds_read_b128 {v(BF + 4 * kc, 4)}, v1 offset:{region + 1024 * kc}', ('b', kc))

    def gemm(seg, hook=None):
        for jt in range(3):
            for kc in range(24):
                idx = seg * 72 + jt * 24 + kc
                k.wait_vm(('w', idx))
                if jt == 0:
                    k.wait_lg(('b', kc))
                c = '0' if kc == 0 else v(ACC + 16 * jt, 16)
                k.op(f'v_mfma_f32_32x32x16_bf16 {v(ACC + 16 * jt, 16)}, {a(4 * (idx % RING), 4)}, '
                     f'{v(BF + 4 * kc, 4)}, {c}')
                if idx + RING < 216:
                    wq(idx + RING)
                if idx + LOOKAHEAD < 216:
                    k.bg_flush_to(('w', idx + LOOKAHEAD))
                if hook and not k.bg and idx + RING >= 216:
                    hook()
                    hook = None

    def pack_acc():
        for j in range(24):
            k.op(f'v_cvt_pk_bf16_f32 {v(PK + j)}, {v(ACC + 2 * j)}, {v(ACC + 2 * j + 1)}')

    def st_write(img, natural):
        for i in range(6):
            if natural:
                for h in range(2):
                    k.ds(f'ds_write_b64 v4, {v(PK + 4 * i + 2 * h, 2)} offset:{img + 32 * i + 16 * h}')
            else:
                k.ds(f'ds_write_b128 v3, {v(PK + 4 * i, 4)} offset:{img + 32 * i}')

    def st_store(img, area, natural, tmp):
        for j in range(6):
            k.ds(f'ds_read_b128 {v(tmp + 4 * j, 4)}, v5 offset:{img + 128 * j}', ('sr', j))
        k.op(f's_mov_b32 s41, {area}')
        for j in range(6):
            k.wait_lg(('sr', j))
            if natural:
                k.vmem(f'buffer_store_dwordx4 {v(tmp + 4 * j, 4)}, {v(GA)}, s[12:15], s41 offen offset:{128 * j} sc1')
            else:
                k.vmem(f'buffer_store_dwordx4 {v(tmp + 4 * j, 4)}, {v(GA + 1 + j % 2)}, s[12:15], s41 offen '
                       f'offset:{256 * (j // 2)} sc1')

    stamp(k, 0)
    k.wait_vm(('x', 5, 1))
    stamp(k, 1)
    ln_stats(LST1)
    unpack()
    ln_apply(XF)
    share(LH)
    stamp(k, 2)
    gemm(0)
    stamp(k, 3)
    for i in range(6):
        k.ds(f'ds_read_b128 {v(BF + 4 * i, 4)}, v9 offset:{LH + 1024 * i}', ('o', i))
    pack_acc()
    for i in range(6):
        k.wait_lg(('o', i))
        c = '0' if i == 0 else v(S_, 16)
        k.op(f'v_mfma_f32_32x32x16_bf16 {v(S_, 16)}, {v(BF + 4 * i, 4)}, {v(PK + 4 * i, 4)}, {c}')
    k.op('s_lshl_b32 s19, s16, 12')
    k.op('v_add_u32 v248, s19, v1')
    for q in range(4):
        k.ds(f'ds_write_b128 v248, {v(S_ + 4 * q, 4)} offset:{LSP + 1024 * q}')
    k.bg_issue(BURST)
    k.barrier()
    SR = BF + 24
    for w in range(4):
        for q in range(4):
            k.ds(f'ds_read_b128 {v(SR + 16 * w + 4 * q, 4)}, v1 offset:{LSP + 4096 * w + 1024 * q}', ('sp', w))
    for c in range(3):
        for m in range(2):
            for p in range(2):
                k.ds(f'ds_read_b64_tr_b16 {v(BF + 8 * c + 4 * m + 2 * p, 2)}, v8 '
                     f'offset:{LH + c * 2048 + m * 256 + p * 128}', ('vt', c, m))
    k.wait_lg(('sp', 3))
    for r in range(0, 16, 2):
        k.op(f'v_pk_add_f32 {v(S_ + r, 2)}, {v(SR + r, 2)}, {v(SR + 16 + r, 2)}')
        k.op(f'v_pk_add_f32 {v(SR + 32 + r, 2)}, {v(SR + 32 + r, 2)}, {v(SR + 48 + r, 2)}')
    for r in range(0, 16, 2):
        k.op(f'v_pk_add_f32 {v(S_ + r, 2)}, {v(S_ + r, 2)}, {v(SR + 32 + r, 2)}')
    for i in range(4):
        k.op(f'v_cndmask_b32 {v(248 + i)}, {v(S_ + i)}, {v(S_ + 4 + i)}, s[22:23]')
    for i in range(4):
        k.op(f'v_cndmask_b32 {v(248 + i)}, {v(248 + i)}, {v(S_ + 8 + i)}, s[24:25]')
    for i in range(4):
        k.op(f'v_cndmask_b32 {v(248 + i)}, {v(248 + i)}, {v(S_ + 12 + i)}, s[26:27]')
    k.op('v_mov_b32 v252, s40')
    k.op('v_cndmask_b32 v251, v251, v252, s[28:29]')
    k.op('v_max3_f32 v252, v248, v249, v250')
    k.op('v_max_f32 v252, v252, v251')
    k.op('v_mov_b32 v253, v252')
    k.op('v_permlane32_swap_b32 v252, v253')
    k.op('v_max_f32 v252, v252, v253')
    for i in range(4):
        k.op(f'v_sub_f32 {v(248 + i)}, {v(248 + i)}, v252')
    for i in range(4):
        k.op(f'v_exp_f32 {v(248 + i)}, {v(248 + i)}')
    k.op('v_add_f32 v252, v248, v249')
    k.op('v_add_f32 v253, v250, v251')
    k.op('v_add_f32 v252, v252, v253')
    xhalf_sum(252, 253)
    k.op('v_rcp_f32 v252, v252')
    for i in range(4):
        k.op(f'v_mul_f32 {v(248 + i)}, {v(248 + i)}, v252')
    k.op('v_cvt_pk_bf16_f32 v252, v248, v249')
    k.op('v_cvt_pk_bf16_f32 v253, v250, v251')
    PF = BF + 88
    for g in range(4):
        for j in range(2):
            k.op(f'v_cndmask_b32 {v(PF + 2 * g + j)}, 0, {v(252 + j)}, s[{20 + 2 * g}:{21 + 2 * g}]')
    for c in range(3):
        for m in range(2):
            k.wait_lg(('vt', c, m))
            cc = '0' if m == 0 else v(ACC + 16 * c, 16)
            k.op(f'v_mfma_f32_32x32x16_bf16 {v(ACC + 16 * c, 16)}, {v(BF + 8 * c + 4 * m, 4)}, '
                 f'{v(PF + 4 * m, 4)}, {cc}')
    pack_acc()
    share(LO_)
    stamp(k, 4)
    gemm(1)
    stamp(k, 5)
    for j in range(0, 48, 2):
        k.op(f'v_pk_add_f32 {v(ACC + j, 2)}, {v(ACC + j, 2)}, {v(XF + j, 2)}')
    pack_acc()
    st_write(STA, True)
    ln_stats(LST2)
    ln_apply(ACC)
    st_write(STB, False)
    share(LH2)
    stamp(k, 6)

    def late_stores():
        st_store(STA, X1, True, XF)
        st_store(STB, H2, False, XF + 24)
    gemm(2, late_stores)
    stamp(k, 7)
    pack_acc()
    st_write(STC, False)
    k.barrier()
    st_store(STC, Q2, False, BF)
    if STAMP:
        k.wait_vm_all()
    stamp(k, 8)
    stamp(k, 15, real=True)
    k.label('K1_END')
    k.op('s_endpgm')
    return k.text(), descriptor('temporal_kernel', 256 + 4 * RING, 256, 80)


K2_LDS = 163840


def gen_k2():
    k = K()
    header(k, 'spatial_kernel')
    k.op('s_cmp_ge_u32 s2, 184')
    k.op('s_cbranch_scc1 K2_END')
    k.op('s_and_b32 s17, s2, 7')
    k.op('s_cmp_eq_u32 s17, 7')
    k.op('s_cbranch_scc1 K2_END')
    k.op('s_lshr_b32 s18, s2, 3')
    k.op('s_load_dwordx2 s[4:5], s[0:1], 40')
    k.op('s_load_dwordx2 s[6:7], s[0:1], 56')
    k.op('v_lshrrev_b32 v1, 6, v0')
    k.op('v_readfirstlane_b32 s16, v1')
    stamp_init(k, 182)
    stamp(k, 14, 14, 15, real=True)
    stamp(k, 12, 14, 15)
    k.op('v_and_b32 v8, 63, v0')
    k.op('v_lshlrev_b32 v1, 4, v8')
    k.op('v_and_b32 v9, 31, v8')
    k.op('v_lshrrev_b32 v10, 5, v8')
    k.op('v_lshrrev_b32 v2, 4, v8')
    k.op('v_mul_u32_u24 v2, 768, v2')
    k.op('v_and_b32 v3, 15, v8')
    k.op('v_lshl_add_u32 v2, v3, 4, v2')
    k.op('s_mul_i32 s19, s16, 40960')
    k.op(f's_mul_i32 s20, s17, {FRAME}')
    k.op(f's_mul_i32 s21, s18, {TILE}')
    k.op('s_add_u32 s21, s21, s20')
    k.op(f's_mul_i32 s22, s16, {TILE}')
    k.op('s_add_u32 s22, s22, s20')
    k.op(f's_add_u32 s22, s22, {H2}')
    k.op('s_mul_i32 s28, s16, 73728')
    k.op('s_waitcnt lgkmcnt(0)')
    srd(k, 8, 4, XBYTES)
    srd(k, 12, 6, WS_BYTES)
    MREF, L_ = 6, 7
    S_, P_, O_ = 16, 32, 40
    KAD, VAD = 232, 240
    QA, KA, VA = 0, 96, 128
    KR, VR = 8, 8

    def blk_off(it, blk):
        return (it % 2) * 16384 + blk * 8192 if blk < 2 else 32768

    def dma1(it, blk, q):
        k.op(f's_add_u32 s26, s19, {blk_off(it, blk) + q * 1024}')
        k.op('s_mov_b32 m0, s26')
        k.op(f's_add_u32 s27, s22, {it * 4 * TILE + blk * 256 + q * 3072}')
        k.vmem('buffer_load_dwordx4 v2, s[12:15], s27 offen lds', ('kv', it, 0 if blk < 2 else 1))

    def dma(it, blks):
        for blk in blks:
            for q in range(8):
                k.bg.append((('kv', it, 0 if blk < 2 else 1), (lambda a_=blk, b_=q: dma1(it, a_, b_))))

    def wslot(idx):
        return 160 + 4 * idx if idx < 24 else (4 * (idx - 24) if idx < 64 else 160 + 4 * (idx - 64))

    def wload(idx):
        k.op(f's_add_u32 s29, s28, {W4 + idx * 1024}')
        k.vmem(f'buffer_load_dwordx4 {a(wslot(idx), 4)}, v1, s[12:15], s29 offen', ('w', idx))

    def wq(idx):
        k.bg.append((('w', idx), lambda: wload(idx)))

    k.op(f's_add_u32 s23, s21, {Q2}')
    k.op('s_mul_i32 s30, s16, 6')
    for i in range(6):
        k.op(f's_add_u32 s31, s30, {i}')
        k.op('s_lshr_b32 s32, s31, 3')
        k.op('s_and_b32 s33, s31, 7')
        k.op('s_lshl_b32 s34, s31, 10')
        k.op('s_add_u32 s34, s34, 16384')
        k.op('s_cmp_eq_u32 s32, 2')
        k.op('s_cselect_b32 s35, 24576, 0')
        k.op('s_add_u32 s34, s34, s35')
        k.op('s_mov_b32 m0, s34')
        k.op('s_lshl_b32 s32, s32, 8')
        k.op('s_mul_i32 s33, s33, 3072')
        k.op('s_add_u32 s32, s32, s33')
        k.op('s_add_u32 s32, s32, s23')
        k.vmem('buffer_load_dwordx4 v2, s[12:15], s32 offen lds', 'q')
    dma(0, [0, 1, 2])
    k.bg_flush()
    k.op('v_and_b32 v11, 3, v9')
    k.op('v_lshlrev_b32 v11, 2, v11')
    k.op('v_bfe_u32 v12, v9, 2, 2')
    k.op('v_or_b32 v11, v11, v12')
    k.op('v_xor_b32 v11, v11, v10')
    k.op('v_lshlrev_b32 v12, 8, v9')
    for e in range(8):
        k.op(f'v_xor_b32 v13, {2 * e}, v11')
        k.op(f'v_lshl_add_u32 {v(KAD + e)}, v13, 4, v12')
    k.op('v_and_b32 v11, 15, v8')
    k.op('v_lshrrev_b32 v12, 2, v11')
    k.op('v_lshl_add_u32 v13, v10, 2, v12')
    k.op('v_lshlrev_b32 v13, 8, v13')
    k.op('v_add_u32 v13, s19, v13')
    k.op('v_bfe_u32 v14, v11, 1, 1')
    k.op('v_lshl_add_u32 v13, v14, 3, v13')
    k.op('v_bfe_u32 v14, v8, 4, 1')
    k.op('v_and_b32 v15, 1, v11')
    k.op('v_lshl_add_u32 v14, v14, 1, v15')
    k.op('v_lshl_add_u32 v12, v12, 2, v10')
    k.op('v_xor_b32 v14, v14, v12')
    for c4 in range(4):
        k.op(f's_add_u32 s26, s16, {c4}')
        k.op('s_and_b32 s26, s26, 3')
        k.op('s_lshl_b32 s26, s26, 2')
        for p in range(2):
            k.op(f'v_xor_b32 v15, {2 * p}, v14')
            k.op('v_xor_b32 v15, s26, v15')
            k.op(f'v_lshl_add_u32 {v(VAD + 2 * c4 + p)}, v15, 4, v13')
            if p:
                k.op(f'v_add_u32 {v(VAD + 2 * c4 + p)}, 2048, {v(VAD + 2 * c4 + p)}')
    k.op(f's_mov_b32 s24, {f32hex(8.0)}')
    k.op('s_mov_b32 s25, 0xff800000')
    k.op(f'v_mov_b32 {v(L_)}, 0')
    stamp(k, 0, 14, 15)
    k.wait_vm('q')
    k.op('s_barrier')
    for kc in range(24):
        blk = kc // 8
        off = 16384 + blk * 8192 if blk < 2 else 57344
        k.ds(f'ds_read_b128 {a(QA + 4 * kc, 4)}, {v(KAD + kc % 8)} offset:{off}', ('qf', kc))
    for e in range(8):
        k.op(f'v_add_u32 {v(KAD + e)}, s19, {v(KAD + e)}')
    k.barrier()

    ct_order = [8, 9, 10, 11, 0, 1, 2, 3, 4, 5, 6, 7]
    wnext = 0
    for it in range(6):
        if it == 5:
            k.bg_flush()
            k.op('s_cmp_eq_u32 s16, 3')
            k.op('s_cbranch_scc1 K2_LOOPDONE')
        stamp(k, 1 + it, 14, 15)
        k.bg_period = 60
        if it < 5:
            dma(it + 1, [0, 1])
            if it >= 1:
                for _ in range(6):
                    wq(wnext); wnext += 1

        def kread(kc):
            k.ds(f'ds_read_b128 {a(KA + 4 * (kc % KR), 4)}, {v(KAD + kc % 8)} offset:{blk_off(it, kc // 8)}', ('k', kc))
        k.wait_vm(('kv', it, 0))
        for kc in range(KR - 2):
            kread(kc)
        for kc in range(24):
            nk = kc + KR - 2
            if nk < 24:
                if nk == 16:
                    k.wait_vm(('kv', it, 1))
                kread(nk)
            k.wait_lg(('k', kc))
            c = '0' if kc == 0 else v(S_, 16)
            k.op(f'v_mfma_f32_32x32x16_bf16 {v(S_, 16)}, {a(KA + 4 * (kc % KR), 4)}, {a(QA + 4 * kc, 4)}, {c}')
        vlist = [(m, ct) for m in range(2) for ct in ct_order]

        def vread(j):
            m, ct = vlist[j]
            for p in range(2):
                k.ds(f'ds_read_b64_tr_b16 {a(VA + 4 * (j % VR) + 2 * p, 2)}, {v(VAD + 2 * (ct % 4) + p)} '
                     f'offset:{blk_off(it, ct // 4) + m * 4096}', ('v', j))
        for j in range(VR - 2):
            vread(j)
        if it == 5:
            with k.nobg():
                k.op('s_cmp_lg_u32 s16, 2')
                k.op('s_cbranch_scc1 K2_NOMASK')
                snap = k.snapshot()
                for r in (13, 14, 15):
                    k.op(f'v_mov_b32 {v(S_ + r)}, s25')
                k.op('s_mov_b32 exec_lo, 0')
                k.op(f'v_mov_b32 {v(S_ + 12)}, s25')
                k.op('s_mov_b32 exec_lo, -1')
                k.nop(4)
                k.label('K2_NOMASK')
                k.restore(snap)
        k.op(f'v_max3_f32 v11, {v(S_)}, {v(S_ + 1)}, {v(S_ + 2)}')
        k.op(f'v_max3_f32 v12, {v(S_ + 3)}, {v(S_ + 4)}, {v(S_ + 5)}')
        k.op(f'v_max3_f32 v11, v11, {v(S_ + 6)}, {v(S_ + 7)}')
        k.op(f'v_max3_f32 v12, v12, {v(S_ + 8)}, {v(S_ + 9)}')
        k.op(f'v_max3_f32 v11, v11, {v(S_ + 10)}, {v(S_ + 11)}')
        k.op(f'v_max3_f32 v12, v12, {v(S_ + 12)}, {v(S_ + 13)}')
        k.op(f'v_max3_f32 v11, v11, {v(S_ + 14)}, {v(S_ + 15)}')
        k.op('v_max_f32 v11, v11, v12')
        k.op('v_mov_b32 v12, v11')
        k.op('v_permlane32_swap_b32 v11, v12')
        k.op('v_max_f32 v11, v11, v12')
        if it == 0:
            k.op(f'v_mov_b32 {v(MREF)}, v11')
        else:
            lab = k.newlabel('K2_NORESC')
            with k.nobg():
                k.op(f'v_sub_f32 v12, v11, {v(MREF)}')
                k.op('v_cmp_lt_f32 vcc, s24, v12')
                k.nop(2)
                k.op(f's_cbranch_vccz {lab}')
                snap = k.snapshot()
                clk0 = k.clk
                k.op(f'v_max_f32 v11, v11, {v(MREF)}')
                k.op(f'v_sub_f32 v12, {v(MREF)}, v11')
                k.op('v_exp_f32 v12, v12')
                k.op(f'v_mov_b32 {v(MREF)}, v11')
                k.op(f'v_mul_f32 {v(L_)}, {v(L_)}, v12')
                for r in range(192):
                    k.op(f'v_mul_f32 {v(O_ + r)}, {v(O_ + r)}, v12')
                k.nop(4)
                k.label(lab)
                k.restore(snap)
                k.clk = clk0
        for r in range(0, 8):
            k.op(f'v_sub_f32 {v(S_ + r)}, {v(S_ + r)}, {v(MREF)}')
        for r in range(0, 8):
            k.op(f'v_exp_f32 {v(S_ + r)}, {v(S_ + r)}')
        for r in range(0, 8, 2):
            k.op(f'v_cvt_pk_bf16_f32 {v(P_ + r // 2)}, {v(S_ + r)}, {v(S_ + r + 1)}')
        filler = []
        for r in range(8, 16):
            filler.append(f'v_sub_f32 {v(S_ + r)}, {v(S_ + r)}, {v(MREF)}')
        for r in range(8, 16):
            filler.append(f'v_exp_f32 {v(S_ + r)}, {v(S_ + r)}')
        for r in range(8, 16, 2):
            filler.append(f'v_cvt_pk_bf16_f32 {v(P_ + r // 2)}, {v(S_ + r)}, {v(S_ + r + 1)}')
        filler.append(f'v_add_f32 v11, {v(S_)}, {v(S_ + 1)}')
        filler.append(f'v_add_f32 v12, {v(S_ + 2)}, {v(S_ + 3)}')
        for r in range(4, 16, 2):
            filler.append(f'v_add_f32 v11, v11, {v(S_ + r)}')
            filler.append(f'v_add_f32 v12, v12, {v(S_ + r + 1)}')
        filler.append('v_add_f32 v11, v11, v12')
        filler.append(f'v_add_f32 {v(L_)}, {v(L_)}, v11')
        for j in range(24):
            m, ct = vlist[j]
            nj = j + VR - 2
            if nj < 24:
                vread(nj)
            if m == 1:
                while len(filler) > 16:
                    k.op(filler.pop(0))
            k.wait_lg(('v', j))
            c = '0' if (it == 0 and m == 0) else v(O_ + 16 * ct, 16)
            k.op(f'v_mfma_f32_32x32x16_bf16 {v(O_ + 16 * ct, 16)}, {a(VA + 4 * (j % VR), 4)}, '
                 f'{v(P_ + 4 * m, 4)}, {c}')
            for _ in range(4):
                if filler:
                    k.op(filler.pop(0))
            if j == 15 and it < 5:
                k.bg_flush()
                k.bg_period = 30
                dma(it + 1, [2])
        while filler:
            k.op(filler.pop(0))
    k.bg_flush()
    k.nop(12)
    k.label('K2_LOOPDONE')
    k.nop(12)
    k.wait_vm_all()
    k.wait_lg_all()
    stamp(k, 7, 14, 15)
    k.bg_period = 60
    k.op('v_lshrrev_b32 v11, 3, v8')
    k.op('s_lshl_b32 s26, s16, 3')
    k.op('v_add_u32 v11, s26, v11')
    k.op('v_and_b32 v12, 7, v8')
    k.op('v_mul_u32_u24 v5, 784, v11')
    k.op('v_lshl_add_u32 v5, v12, 4, v5')
    k.op('v_mul_u32_u24 v13, 768, v11')
    k.op('v_lshl_add_u32 v13, v12, 4, v13')
    k.op(f's_add_u32 s26, s21, {X1}')
    XR = 232
    for j in range(6):
        k.vmem(f'buffer_load_dwordx4 {v(XR + 4 * j, 4)}, v13, s[12:15], s26 offen offset:{128 * j}', ('x1', j))
    with k.nobg():
        k.op('s_lshl_b32 s26, s18, 5')
        k.op('v_add_u32 v11, s26, v11')
        k.op('s_movk_i32 s27, 729')
        k.op('v_cmp_gt_u32 vcc, s27, v11')
        k.op('s_mul_i32 s27, s17, 729')
        k.op('s_add_u32 s27, s27, s26')
        k.op('s_mul_i32 s27, s27, 768')
        k.op('v_add_u32 v13, s27, v13')
        k.op(f'v_mov_b32 v12, {BIG}')
        k.op('v_cndmask_b32 v15, v12, v13, vcc')
    for idx in range(wnext, 64):
        wq(idx)
    k.op(f'v_mov_b32 v12, {v(L_)}')
    k.op(f'v_permlane32_swap_b32 {v(L_)}, v12')
    k.op(f'v_add_f32 {v(L_)}, {v(L_)}, v12')
    k.op('v_lshlrev_b32 v11, 3, v9')
    k.op('v_add_u32 v12, s19, v11')
    k.ds(f'ds_write_b64 v12, {v(MREF, 2)} offset:36864')
    k.op('v_add_u32 v13, s19, v1')
    for e in range(1, 4):
        for b in range(3):
            for q in range(4):
                k.ds(f'ds_write_b128 v13, {v(O_ + 16 * (4 * b + e) + 4 * q, 4)} '
                     f'offset:{(e - 1) * 12288 + b * 4096 + q * 1024}')
    for e in range(1, 4):
        k.op(f's_sub_u32 s26, s16, {e}')
        k.op('s_and_b32 s26, s26, 3')
        k.op('s_mul_i32 s26, s26, 40960')
        k.op(f'v_add_u32 v{1 + e}, s26, v1')
        k.op(f'v_add_u32 {v(P_ + e)}, s26, v11')
    k.bg_issue(8)
    k.barrier()
    k.op(f'v_mov_b32 {v(S_)}, {v(MREF)}')
    k.op(f'v_mov_b32 {v(S_ + 1)}, {v(L_)}')
    for e in range(1, 4):
        k.ds(f'ds_read_b64 {v(S_ + 2 * e, 2)}, {v(P_ + e)} offset:36864', 'st')
    PKR = 16
    for e in range(1, 4):
        for b in range(3):
            for q in range(4):
                k.ds(f'ds_read_b128 {v(O_ + 16 * (4 * b + e) + 4 * q, 4)}, v{1 + e} '
                     f'offset:{(e - 1) * 12288 + b * 4096 + q * 1024}', ('p', e))
    k.wait_lg('st')
    k.op(f'v_max3_f32 v12, {v(S_)}, {v(S_ + 2)}, {v(S_ + 4)}')
    k.op(f'v_max_f32 v12, v12, {v(S_ + 6)}')
    for w in range(4):
        k.op(f'v_sub_f32 {v(S_ + 2 * w)}, {v(S_ + 2 * w)}, v12')
    for w in range(4):
        k.op(f'v_exp_f32 {v(S_ + 2 * w)}, {v(S_ + 2 * w)}')
    k.op(f'v_mul_f32 v13, {v(S_)}, {v(S_ + 1)}')
    for w in range(1, 4):
        k.op(f'v_fmac_f32 v13, {v(S_ + 2 * w)}, {v(S_ + 2 * w + 1)}')
    k.op('v_rcp_f32 v13, v13')
    for w in range(4):
        k.op(f'v_mul_f32 {v(S_ + 2 * w)}, {v(S_ + 2 * w)}, v13')
    for b in range(3):
        for r in range(0, 16, 2):
            o = O_ + 64 * b + r
            k.op(f'v_pk_mul_f32 {v(o, 2)}, {v(o, 2)}, {v(S_, 2)} op_sel_hi:[1,0]')
    for e in range(1, 4):
        k.wait_lg(('p', e))
        for b in range(3):
            for r in range(0, 16, 2):
                o = O_ + 64 * b + r
                k.op(f'v_pk_fma_f32 {v(o, 2)}, {v(o + 16 * e, 2)}, {v(S_ + 2 * e, 2)}, {v(o, 2)} op_sel_hi:[1,0,1]')
    for b in range(3):
        for j in range(8):
            o = O_ + 64 * b + 2 * j
            k.op(f'v_cvt_pk_bf16_f32 {v(PKR + 8 * b + j)}, {v(o)}, {v(o + 1)}')
    for b in range(3):
        for h in range(2):
            k.ds(f'ds_write_b128 v4, {v(PKR + 8 * b + 4 * h, 4)} offset:{24576 + 2048 * b + 1024 * h}')
    for x in range(1, 4):
        k.op(f'v_add_u32 v{1 + x}, {40960 * x}, v1')
    k.bg_flush()
    k.barrier()
    BF = 40
    stamp(k, 8, 13, 14)
    for kc in range(24):
        own = (kc % 8) // 2
        x = (own + 1) % 4
        k.ds(f'ds_read_b128 {v(BF + 4 * kc, 4)}, v{1 + x} offset:{24576 + 2048 * (kc // 8) + 1024 * (kc % 2)}', ('b', kc))
    k.op('v_mul_u32_u24 v11, 784, v9')
    k.op('s_mul_i32 s27, s16, 192')
    k.op('v_add_u32 v11, s27, v11')
    k.op('v_lshl_add_u32 v11, v10, 3, v11')
    ACC = 136
    for jt in range(3):
        for kc in range(24):
            idx = jt * 24 + kc
            k.wait_vm(('w', idx))
            if jt == 0:
                k.wait_lg(('b', kc))
            c = '0' if kc == 0 else v(ACC + 16 * jt, 16)
            k.op(f'v_mfma_f32_32x32x16_bf16 {v(ACC + 16 * jt, 16)}, {a(wslot(idx), 4)}, {v(BF + 4 * kc, 4)}, {c}')
            if idx < 8:
                wload(idx + 64)
    stamp(k, 9, 13, 14)
    for j in range(24):
        k.op(f'v_cvt_pk_bf16_f32 {v(PKR + j)}, {v(ACC + 2 * j)}, {v(ACC + 2 * j + 1)}')
        if j % 2:
            i, h = j // 4, (j // 2) % 2
            k.ds(f'ds_write_b64 v11, {v(PKR + 4 * i + 2 * h, 2)} offset:{32 * i + 16 * h}')
    k.barrier()
    DR = 40
    for j in range(6):
        k.ds(f'ds_read_b128 {v(DR + 4 * j, 4)}, v5 offset:{128 * j}', ('d', j))
    k.op('s_mov_b32 s27, 0xffff0000')
    k.wait_vm(('x1', 5))
    for j in range(6):
        k.wait_lg(('d', j))
        for q in range(4):
            r = 4 * j + q
            t0 = 64 + 4 * (q % 2)
            k.op(f'v_lshlrev_b32 {v(t0)}, 16, {v(XR + r)}')
            k.op(f'v_and_b32 {v(t0 + 1)}, s27, {v(XR + r)}')
            k.op(f'v_lshlrev_b32 {v(t0 + 2)}, 16, {v(DR + r)}')
            k.op(f'v_and_b32 {v(t0 + 3)}, s27, {v(DR + r)}')
            k.op(f'v_pk_add_f32 {v(t0, 2)}, {v(t0, 2)}, {v(t0 + 2, 2)}')
            k.op(f'v_cvt_pk_bf16_f32 {v(DR + r)}, {v(t0)}, {v(t0 + 1)}')
        k.vmem(f'buffer_store_dwordx4 {v(DR + 4 * j, 4)}, v15, s[8:11], 0 offen offset:{128 * j} sc1')
    if STAMP:
        k.wait_vm_all()
    stamp(k, 10, 13, 14)
    stamp(k, 15, 13, 14, real=True)
    k.label('K2_END')
    k.op('s_endpgm')
    return k.text(), descriptor('spatial_kernel', 512, 256, 80)


def main():
    out = []
    out.append(f'; @launch kernel=fold_kernel grid=(144,1,1) block=(256,1,1) lds={K0_LDS}')
    out.append(f'; @launch kernel=temporal_kernel grid=(183,1,1) block=(256,1,1) lds={K1_LDS}')
    out.append(f'; @launch kernel=spatial_kernel grid=(184,1,1) block=(256,1,1) lds={K2_LDS}')
    out.append('.amdgcn_target "amdgcn-amd-amdhsa--gfx950"')
    out.append('.text')
    descs = []
    for g in (gen_k0, gen_k1, gen_k2):
        t, d = g()
        out.append(t)
        descs.append(d)
    out.append('.section .rodata,"a"')
    for d in descs:
        out.append('.p2align 6')
        out.append(d)
    open(sys.argv[1], 'w').write('\n'.join(out) + '\n')


if __name__ == '__main__':
    main()
```

```python
import sys, os, struct
sys.path.insert(0, os.path.dirname(__file__))
from asmlib import K, v, a, s

T, N, C = 7, 729, 384
W1, W2, W3, W4 = 0, 0x48000, 0x90000, 0xD8000
H2, Q2, X1 = 0x200000, 0x600000, 0xA00000
H1 = 0xE00000
TILE = 24576
FRAME = 23 * TILE
XBYTES = T * N * C * 2
WS_BYTES = 0x10000000
BIG = 0x7F000000
SCALE_LOG2E = (C ** -0.5) * 1.4426950408889634
STAMP = os.environ.get('STAMP', '0') == '1'


def f32hex(x):
    return '0x%08x' % struct.unpack('<I', struct.pack('<f', x))[0]


def srd(k, base, ptr, nbytes):
    k.op(f's_mov_b32 s{base}, s{ptr}')
    k.op(f's_and_b32 s{base + 1}, s{ptr + 1}, 0xffff')
    k.op(f's_mov_b32 s{base + 2}, {nbytes}')
    k.op(f's_mov_b32 s{base + 3}, 0x00020000')


def stamp_init(k, lastwg=182):
    if not STAMP:
        return
    with k.nobg():
        k.op('s_load_dwordx2 s[60:61], s[0:1], 48')
        k.op('s_waitcnt lgkmcnt(0)')
        k.lg = []
        srd(k, 64, 60, 256)
        k.op('s_mov_b32 s70, 0x1000')
        k.op('s_or_b32 s69, s2, s16')
        k.op('s_cmp_eq_u32 s69, 0')
        k.op('s_cselect_b32 s70, 0, s70')
        k.op(f's_xor_b32 s69, s2, {lastwg}')
        k.op('s_or_b32 s69, s69, s16')
        k.op('s_cmp_eq_u32 s69, 0')
        k.op('s_cselect_b32 s70, 128, s70')


def stamp(k, idx, r0=254, r1=255, real=False):
    if not STAMP:
        return
    with k.nobg():
        k.op('s_waitcnt lgkmcnt(0)')
        k.lg = []
        k.op('s_memrealtime s[62:63]' if real else 's_memtime s[62:63]')
        k.op('s_waitcnt lgkmcnt(0)')
        k.op(f's_add_u32 s69, s70, {4 * idx}')
        k.op(f'v_mov_b32 v{r1}, s62')
        k.op(f'v_mov_b32 v{r0}, s69')
        k.vmem(f'buffer_store_dword v{r1}, v{r0}, s[64:67], 0 offen')


def header(k, name):
    k.raw(f'.globl {name}')
    k.raw('.p2align 8')
    k.raw(f'.type {name},@function')
    k.raw(f'{name}:')


def descriptor(name, nvgpr, accum, nsgpr):
    return f'''.amdhsa_kernel {name}
  .amdhsa_next_free_vgpr {nvgpr}
  .amdhsa_next_free_sgpr {nsgpr}
  .amdhsa_accum_offset {accum}
  .amdhsa_group_segment_fixed_size 0
  .amdhsa_kernarg_size 64
  .amdhsa_user_sgpr_count 2
  .amdhsa_user_sgpr_kernarg_segment_ptr 1
  .amdhsa_system_sgpr_workgroup_id_x 1
  .amdhsa_float_denorm_mode_32 3
.end_amdhsa_kernel'''


K0_LDS = 98304


def gen_k0():
    k = K()
    header(k, 'fold_kernel')
    k.op('s_cmp_ge_u32 s2, 144')
    k.op('s_cbranch_scc1 K0_END')
    k.op('s_load_dwordx4 s[4:7], s[0:1], 8')
    k.op('s_load_dwordx4 s[8:11], s[0:1], 24')
    k.op('s_load_dwordx2 s[12:13], s[0:1], 56')
    k.op('v_lshrrev_b32 v1, 6, v0')
    k.op('v_readfirstlane_b32 s16, v1')
    k.op('v_and_b32 v1, 63, v0')
    k.op('s_mul_hi_u32 s14, s2, 0x071C71C8')
    k.op('s_mul_i32 s15, s14, 36')
    k.op('s_sub_u32 s15, s2, s15')
    k.op('s_mul_hi_u32 s17, s15, 0x2AAAAAAB')
    k.op('s_mul_i32 s18, s17, 6')
    k.op('s_sub_u32 s18, s15, s18')
    k.op('s_and_b32 s19, s14, 1')
    k.op('s_waitcnt lgkmcnt(0)')
    k.op('s_cmp_lt_u32 s14, 2')
    k.op('s_cselect_b32 s20, s4, s8')
    k.op('s_cselect_b32 s21, s5, s9')
    k.op('s_cselect_b32 s22, s6, s10')
    k.op('s_cselect_b32 s23, s7, s11')
    srd(k, 24, 20, C * 3 * C * 2)
    srd(k, 28, 22, C * C * 2)
    srd(k, 32, 12, WS_BYTES)
    k.op('s_mul_i32 s36, s16, 768')
    k.op('s_lshl_b32 s37, s17, 6')
    k.op('s_mul_i32 s37, s37, 2304')
    k.op('s_mul_i32 s38, s19, 1536')
    k.op('s_add_u32 s37, s37, s38')
    k.op('s_lshl_b32 s38, s18, 6')
    k.op('s_mul_i32 s38, s38, 2304')
    k.op('s_add_u32 s38, s38, 768')
    k.op('s_mov_b32 s39, 0x05555556')
    k.op('s_movk_i32 s40, 2304')
    k.op('s_mul_i32 s41, s16, 12288')
    for u in range(12):
        k.op(f'v_add_u32 v2, s36, v1')
        if u:
            k.op(f'v_add_u32 v2, {64 * u}, v2')
        k.op('v_mul_hi_u32 v3, v2, s39')
        k.op('v_mul_u32_u24 v4, 48, v3')
        k.op('v_sub_u32 v4, v2, v4')
        k.op('v_xor_b32 v5, v4, v3')
        k.op('v_and_b32 v5, 15, v5')
        k.op('v_and_b32 v4, 48, v4')
        k.op('v_or_b32 v4, v4, v5')
        k.op('v_mul_lo_u32 v3, v3, s40')
        k.op(f'v_lshl_add_u32 {v(16 + u)}, v4, 4, v3')
    for u in range(12):
        k.op(f's_add_u32 s42, s41, {u * 1024}')
        k.op('s_mov_b32 m0, s42')
        k.op(f'buffer_load_dwordx4 {v(16 + u)}, s[24:27], s37 offen lds')
    k.op('s_cmp_eq_u32 s19, 1')
    k.op('s_cbranch_scc1 K0_VO')
    for u in range(12):
        k.op(f's_add_u32 s42, s41, {49152 + u * 1024}')
        k.op('s_mov_b32 m0, s42')
        k.op(f'buffer_load_dwordx4 {v(16 + u)}, s[24:27], s38 offen lds')
    k.op('s_branch K0_ST')
    k.label('K0_VO')
    k.op('v_lshrrev_b32 v2, 3, v1')
    k.op('v_mul_u32_u24 v2, 768, v2')
    k.op('v_and_b32 v3, 7, v1')
    k.op('v_lshl_add_u32 v2, v3, 4, v2')
    k.op('s_lshl_b32 s43, s18, 7')
    k.op('s_mul_i32 s44, s16, 73728')
    k.op('s_add_u32 s43, s43, s44')
    for u in range(12):
        k.op(f's_add_u32 s42, s41, {49152 + u * 1024}')
        k.op('s_mov_b32 m0, s42')
        k.op(f's_add_u32 s44, s43, {u * 6144}')
        k.op('buffer_load_dwordx4 v2, s[28:31], s44 offen lds')
    k.label('K0_ST')
    k.op('s_cmp_ge_u32 s2, 42')
    k.op('s_cbranch_scc1 K0_NOZERO')
    k.op('s_mul_hi_u32 s36, s2, 0x2AAAAAAB')
    k.op('s_mul_i32 s37, s36, 6')
    k.op('s_sub_u32 s37, s2, s37')
    k.op('s_lshl_b32 s37, s37, 12')
    k.op(f's_mul_i32 s38, s36, {FRAME}')
    k.op('s_add_u32 s38, s38, s37')
    k.op(f's_add_u32 s38, s38, {H2 + 22 * TILE}')
    k.op('v_lshlrev_b32 v2, 4, v0')
    k.op('v_mov_b32 v4, 0')
    k.op('v_mov_b32 v5, 0')
    k.op('v_mov_b32 v6, 0')
    k.op('v_mov_b32 v7, 0')
    k.op('buffer_store_dwordx4 v[4:7], v2, s[32:35], s38 offen sc1')
    k.label('K0_NOZERO')
    k.nop(3)
    k.op('s_lshr_b32 s45, s16, 1')
    k.op('s_and_b32 s46, s16, 1')
    k.op('v_and_b32 v2, 31, v1')
    k.op('v_lshrrev_b32 v3, 5, v1')
    k.op('s_lshl_b32 s47, s45, 5')
    k.op('v_add_u32 v4, s47, v2')
    k.op('v_xor_b32 v5, v3, v4')
    k.op('v_and_b32 v5, 15, v5')
    k.op('v_mul_u32_u24 v4, 768, v4')
    for e in range(8):
        k.op(f'v_xor_b32 v6, {2 * e}, v5')
        k.op(f'v_lshl_add_u32 {v(32 + e)}, v6, 4, v4')
    k.op('s_lshl_b32 s47, s46, 5')
    k.op('v_add_u32 v4, s47, v2')
    k.op('v_xor_b32 v5, v3, v4')
    k.op('v_and_b32 v5, 15, v5')
    k.op('v_mul_u32_u24 v4, 768, v4')
    k.op('v_add_u32 v4, 49152, v4')
    for e in range(8):
        k.op(f'v_xor_b32 v6, {2 * e}, v5')
        k.op(f'v_lshl_add_u32 {v(40 + e)}, v6, 4, v4')
    k.op('v_and_b32 v6, 15, v1')
    k.op('v_lshrrev_b32 v7, 2, v6')
    k.op('v_lshl_add_u32 v7, v3, 3, v7')
    k.op('v_lshlrev_b32 v7, 7, v7')
    k.op('v_and_b32 v8, 3, v6')
    k.op('v_lshl_add_u32 v7, v8, 3, v7')
    k.op('v_bfe_u32 v8, v1, 4, 1')
    k.op('v_lshl_add_u32 v7, v8, 5, v7')
    k.op('s_lshl_b32 s47, s46, 6')
    k.op('s_add_u32 s47, s47, 49152')
    k.op('v_add_u32 v7, s47, v7')
    k.op('s_waitcnt vmcnt(0)')
    k.op('s_barrier')
    AF, BF, D = 48, 144, 240
    for cc in range(24):
        k.op(f'ds_read_b128 {v(AF + 4 * cc, 4)}, {v(32 + cc % 8)} offset:{(cc // 8) * 256}')
    k.op('s_cmp_eq_u32 s19, 1')
    k.op('s_cbranch_scc1 K0_VO2')
    for cc in range(24):
        k.op(f'ds_read_b128 {v(BF + 4 * cc, 4)}, {v(40 + cc % 8)} offset:{(cc // 8) * 256}')
    k.op(f's_mov_b32 s40, {f32hex(SCALE_LOG2E)}')
    k.op('s_branch K0_MM')
    k.label('K0_VO2')
    for cc in range(24):
        for p in range(2):
            k.op(f'ds_read_b64_tr_b16 {v(BF + 4 * cc + 2 * p, 2)}, v7 offset:{cc * 2048 + p * 512}')
    k.op('s_mov_b32 s40, 1.0')
    k.label('K0_MM')
    k.op('s_waitcnt lgkmcnt(0)')
    for cc in range(24):
        c = '0' if cc == 0 else v(D, 16)
        k.op(f'v_mfma_f32_32x32x16_bf16 {v(D, 16)}, {v(AF + 4 * cc, 4)}, {v(BF + 4 * cc, 4)}, {c}')
    for r in range(16):
        k.op(f'v_mul_f32 {v(D + r)}, s40, {v(D + r)}')
    for r in range(8):
        k.op(f'v_cvt_pk_bf16_f32 {v(8 + r)}, {v(D + 2 * r)}, {v(D + 2 * r + 1)}')
    k.op(f's_mul_i32 s36, s14, {W2}')
    k.op('s_lshl_b32 s37, s18, 1')
    k.op('s_add_u32 s37, s37, s46')
    k.op('s_mul_i32 s37, s37, 24')
    k.op('s_lshl_b32 s38, s17, 1')
    k.op('s_add_u32 s38, s38, s45')
    k.op('s_lshl_b32 s38, s38, 1')
    k.op('s_add_u32 s37, s37, s38')
    k.op('s_lshl_b32 s37, s37, 10')
    k.op('s_add_u32 s36, s36, s37')
    k.op('v_lshlrev_b32 v2, 4, v1')
    k.op('buffer_store_dwordx4 v[8:11], v2, s[32:35], s36 offen sc1')
    k.op('buffer_store_dwordx4 v[12:15], v2, s[32:35], s36 offen offset:1024 sc1')
    k.label('K0_END')
    k.op('s_endpgm')
    return k.text(), descriptor('fold_kernel', 256, 256, 56)


LH, LO_, LH2, LSP, LST1, LST2 = 0, 24576, 0, 49152, 0, 1024
STA, STB, STC = 0, 25088, 50176
K1_LDS = 67584 + 3 * 25088
RING = 60
LOOKAHEAD = 16
BURST = int(os.environ.get('BURST', '6'))
WB = int(os.environ.get('WB', '0'))
PER = int(os.environ.get('PER', '60'))


def gen_k1():
    k = K()
    header(k, 'temporal_kernel')
    k.op('s_cmp_ge_u32 s2, 183')
    k.op('s_cbranch_scc1 K1_END')
    k.op('s_load_dwordx2 s[4:5], s[0:1], 0')
    k.op('s_load_dwordx2 s[6:7], s[0:1], 56')
    k.op('v_lshrrev_b32 v1, 6, v0')
    k.op('v_readfirstlane_b32 s16, v1')
    stamp_init(k, 182)
    stamp(k, 14, real=True)
    stamp(k, 12)
    k.op('v_and_b32 v10, 63, v0')
    k.op('v_lshlrev_b32 v1, 4, v10')
    k.op('v_and_b32 v11, 31, v10')
    k.op('v_lshrrev_b32 v12, 5, v10')
    k.op('v_lshrrev_b32 v13, 3, v11')
    k.op('v_and_b32 v14, 7, v11')
    k.op('s_lshl_b32 s18, s2, 2')
    k.op('v_add_u32 v15, s18, v13')
    k.op('v_cmp_gt_u32 s[30:31], 7, v14')
    k.op('s_movk_i32 s19, 729')
    k.op('v_cmp_gt_u32 s[32:33], s19, v15')
    k.op('s_and_b64 s[30:31], s[30:31], s[32:33]')
    k.op('v_mul_lo_u32 v2, v14, s19')
    k.op('v_add_u32 v2, v2, v15')
    k.op('s_movk_i32 s19, 768')
    k.op('v_mul_lo_u32 v2, v2, s19')
    k.op('v_lshl_add_u32 v2, v12, 3, v2')
    k.op('s_mul_i32 s19, s16, 192')
    k.op('v_add_u32 v2, s19, v2')
    k.op(f'v_mov_b32 v248, {BIG}')
    k.op('v_cndmask_b32 v2, v248, v2, s[30:31]')
    k.op('s_mul_i32 s17, s16, 73728')
    k.op('s_waitcnt lgkmcnt(0)')
    srd(k, 8, 4, XBYTES)
    srd(k, 12, 6, WS_BYTES)
    XF, ACC, PK, BF, S_ = 16, 64, 112, 136, 232
    GA = 13
    for i in range(6):
        for h in range(2):
            k.vmem(f'buffer_load_dwordx2 {v(PK + 4 * i + 2 * h, 2)}, v2, s[8:11], 0 offen offset:{32 * i + 16 * h}',
                   ('x', i, h))
    segs = [W1, W2, W3]

    def wload(idx):
        seg, kk = idx // 72, idx % 72
        if kk % 4 == 0:
            k.op(f's_add_u32 s18, s17, {segs[seg] + kk * 1024}')
        k.vmem(f'buffer_load_dwordx4 {a(4 * (idx % RING), 4)}, v1, s[12:15], s18 offen offset:{(kk % 4) * 1024}',
               ('w', idx))

    def wq(idx):
        k.bg.append((('w', idx), lambda: wload(idx)))

    for idx in range(RING):
        wq(idx)
    k.bg_period = PER
    k.bg_issue(12)

    with k.nobg():
        for g in range(4):
            k.op(f'v_cmp_eq_u32 s[{20 + 2 * g}:{21 + 2 * g}], {g}, v13')
    k.op('v_mul_u32_u24 v3, 784, v11')
    k.op('v_add_u32 v3, 0x10800, v3')
    k.op('s_mul_i32 s19, s16, 192')
    k.op('v_add_u32 v3, s19, v3')
    k.op('v_lshl_add_u32 v4, v12, 3, v3')
    k.op('v_lshl_add_u32 v3, v12, 4, v3')
    k.op('v_lshrrev_b32 v249, 3, v10')
    k.op('v_and_b32 v250, 7, v10')
    k.op('s_lshl_b32 s19, s16, 3')
    k.op('v_add_u32 v251, s19, v249')
    k.op('v_mul_u32_u24 v5, 784, v251')
    k.op('v_lshl_add_u32 v5, v250, 4, v5')
    k.op('v_add_u32 v5, 0x10800, v5')
    k.op('s_lshl_b32 s42, s2, 2')
    k.op('s_add_u32 s42, s42, s16')
    k.op('s_and_b32 s43, s42, 3')
    k.op('s_lshl_b32 s43, s43, 2')
    k.op('s_bfe_u32 s44, s42, 0x20002')
    k.op('s_or_b32 s43, s43, s44')
    k.op(f'v_mul_u32_u24 v253, {736 * 768 // 256}, v249')
    k.op('v_lshlrev_b32 v253, 8, v253')
    k.op('s_mul_i32 s44, s42, 768')
    k.op('v_add_u32 v253, s44, v253')
    with k.nobg():
        k.op('v_cmp_gt_u32 s[32:33], 7, v249')
        k.op('s_cmp_lt_u32 s42, 729')
        k.op('s_cselect_b64 s[32:33], s[32:33], 0')
    k.op('v_cndmask_b32 v253, v248, v253, s[32:33]')
    k.op('v_lshl_add_u32 v13, v250, 4, v253')
    k.op('s_lshr_b32 s45, s42, 5')
    k.op(f's_mul_i32 s45, s45, {TILE}')
    k.op('s_and_b32 s46, s42, 31')
    k.op('s_lshl_b32 s46, s46, 8')
    k.op('s_add_u32 s45, s45, s46')
    k.op('s_sub_u32 s45, s45, s44')
    k.op('v_add_u32 v253, s45, v253')
    k.op('v_xor_b32 v251, s43, v250')
    k.op('v_lshl_add_u32 v14, v251, 4, v253')
    k.op('v_xor_b32 v251, 8, v251')
    k.op('v_lshl_add_u32 v15, v251, 4, v253')
    k.op('v_lshlrev_b32 v7, 3, v11')
    k.op('v_add_u32 v7, 0x10000, v7')
    k.op('s_lshl_b32 s19, s16, 8')
    k.op('v_add_u32 v6, s19, v7')
    k.op('v_and_b32 v249, 15, v10')
    k.op('v_lshrrev_b32 v250, 2, v249')
    k.op('v_lshl_add_u32 v250, v12, 2, v250')
    k.op('v_lshlrev_b32 v8, 4, v250')
    k.op('v_bfe_u32 v250, v10, 4, 1')
    k.op('v_lshl_add_u32 v8, v250, 10, v8')
    k.op('v_and_b32 v250, 1, v249')
    k.op('v_lshl_add_u32 v8, v250, 9, v8')
    k.op('v_bfe_u32 v250, v249, 1, 1')
    k.op('v_lshl_add_u32 v8, v250, 3, v8')
    k.op('s_mul_i32 s19, s16, 6144')
    k.op('v_add_u32 v8, s19, v8')
    k.op('v_add_u32 v9, s19, v1')
    k.op('s_mov_b32 s28, 0')
    k.op('s_mov_b32 s29, -1')
    k.op('s_mov_b32 s34, 0xffff0000')
    k.op('s_mov_b32 s35, 0x3f803f80')
    k.op(f's_mov_b32 s36, {f32hex(1.0 / 384)}')
    k.op(f's_mov_b32 s37, {f32hex(1e-5)}')
    k.op('s_mov_b32 s40, 0xff800000')

    def unpack():
        for j in range(24):
            k.op(f'v_lshlrev_b32 {v(XF + 2 * j)}, 16, {v(PK + j)}')
            k.op(f'v_and_b32 {v(XF + 2 * j + 1)}, s34, {v(PK + j)}')

    def xhalf_sum(r, tmp):
        k.op(f'v_mov_b32 {v(tmp)}, {v(r)}')
        k.op(f'v_permlane32_swap_b32 {v(r)}, {v(tmp)}')
        k.op(f'v_add_f32 {v(r)}, {v(r)}, {v(tmp)}')

    def ln_stats(st):
        for c in range(4):
            k.op(f'v_mov_b32 {v(248 + c)}, 0')
        for j in range(24):
            c = j % 2
            k.op(f'v_dot2c_f32_bf16 {v(248 + c)}, s35, {v(PK + j)}')
            k.op(f'v_dot2c_f32_bf16 {v(250 + c)}, {v(PK + j)}, {v(PK + j)}')
        k.op('v_add_f32 v248, v248, v249')
        k.op('v_add_f32 v249, v250, v251')
        k.op('v_mov_b32 v250, v248')
        k.op('v_mov_b32 v251, v249')
        k.op('v_permlane32_swap_b32 v248, v250')
        k.op('v_permlane32_swap_b32 v249, v251')
        k.op('v_add_f32 v248, v248, v250')
        k.op('v_add_f32 v249, v249, v251')
        k.ds(f'ds_write_b64 v6, v[248:249] offset:{st}')
        k.bg_issue(BURST)
        k.barrier()
        for w in range(4):
            k.ds(f'ds_read_b64 {v(S_ + 2 * w, 2)}, v7 offset:{st + 256 * w}', 'st')

    def ln_apply(src):
        k.bg_issue(WB)
        k.wait_lg('st')
        k.op(f'v_pk_add_f32 v[248:249], {v(S_, 2)}, {v(S_ + 2, 2)}')
        k.op(f'v_pk_add_f32 v[250:251], {v(S_ + 4, 2)}, {v(S_ + 6, 2)}')
        k.op('v_pk_add_f32 v[248:249], v[248:249], v[250:251]')
        k.op('v_mul_f32 v248, s36, v248')
        k.op('v_mul_f32 v249, s36, v249')
        k.op('v_fma_f32 v249, -v248, v248, v249')
        k.op('v_max_f32 v249, 0, v249')
        k.op('v_add_f32 v249, s37, v249')
        k.op('v_rsq_f32 v250, v249')
        k.op('v_mul_f32 v252, v248, v250')
        for j in range(24):
            tp = 254 if j % 2 else 248
            k.op(f'v_pk_fma_f32 {v(tp, 2)}, {v(src + 2 * j, 2)}, v[250:251], v[252:253] '
                 f'op_sel_hi:[1,0,0] neg_lo:[0,0,1] neg_hi:[0,0,1]')
            k.op(f'v_cvt_pk_bf16_f32 {v(PK + j)}, {v(tp)}, {v(tp + 1)}')

    def share(region):
        for i in range(6):
            k.ds(f'ds_write_b128 v9, {v(PK + 4 * i, 4)} offset:{region + 1024 * i}')
        k.bg_issue(BURST)
        k.barrier()
        for kc in range(24):
            k.ds(f'ds_read_b128 {v(BF + 4 * kc, 4)}, v1 offset:{region + 1024 * kc}', ('b', kc))

    def gemm(seg, hook=None):
        for jt in range(3):
            for kc in range(24):
                idx = seg * 72 + jt * 24 + kc
                k.wait_vm(('w', idx))
                if jt == 0:
                    k.wait_lg(('b', kc))
                c = '0' if kc == 0 else v(ACC + 16 * jt, 16)
                k.op(f'v_mfma_f32_32x32x16_bf16 {v(ACC + 16 * jt, 16)}, {a(4 * (idx % RING), 4)}, '
                     f'{v(BF + 4 * kc, 4)}, {c}')
                if idx + RING < 216:
                    wq(idx + RING)
                if idx + LOOKAHEAD < 216:
                    k.bg_flush_to(('w', idx + LOOKAHEAD))
                if hook and not k.bg and idx + RING >= 216:
                    hook()
                    hook = None

    def pack_acc():
        for j in range(24):
            k.op(f'v_cvt_pk_bf16_f32 {v(PK + j)}, {v(ACC + 2 * j)}, {v(ACC + 2 * j + 1)}')

    def st_write(img, natural):
        for i in range(6):
            if natural:
                for h in range(2):
                    k.ds(f'ds_write_b64 v4, {v(PK + 4 * i + 2 * h, 2)} offset:{img + 32 * i + 16 * h}')
            else:
                k.ds(f'ds_write_b128 v3, {v(PK + 4 * i, 4)} offset:{img + 32 * i}')

    def st_store(img, area, natural, tmp):
        for j in range(6):
            k.ds(f'ds_read_b128 {v(tmp + 4 * j, 4)}, v5 offset:{img + 128 * j}', ('sr', j))
        k.op(f's_mov_b32 s41, {area}')
        for j in range(6):
            k.wait_lg(('sr', j))
            if not natural and j in (2, 4):
                k.op(f's_mov_b32 s41, {area + (j // 2) * 8192}')
            if natural:
                k.vmem(f'buffer_store_dwordx4 {v(tmp + 4 * j, 4)}, {v(GA)}, s[12:15], s41 offen offset:{128 * j} sc1')
            else:
                k.vmem(f'buffer_store_dwordx4 {v(tmp + 4 * j, 4)}, {v(GA + 1 + j % 2)}, s[12:15], s41 offen '
                       f'sc1')

    stamp(k, 0)
    k.wait_vm(('x', 5, 1))
    stamp(k, 1)
    ln_stats(LST1)
    unpack()
    ln_apply(XF)
    share(LH)
    stamp(k, 2)
    gemm(0)
    stamp(k, 3)
    for i in range(6):
        k.ds(f'ds_read_b128 {v(BF + 4 * i, 4)}, v9 offset:{LH + 1024 * i}', ('o', i))
    pack_acc()
    for i in range(6):
        k.wait_lg(('o', i))
        c = '0' if i == 0 else v(S_, 16)
        k.op(f'v_mfma_f32_32x32x16_bf16 {v(S_, 16)}, {v(BF + 4 * i, 4)}, {v(PK + 4 * i, 4)}, {c}')
    k.op('s_lshl_b32 s19, s16, 12')
    k.op('v_add_u32 v248, s19, v1')
    for q in range(4):
        k.ds(f'ds_write_b128 v248, {v(S_ + 4 * q, 4)} offset:{LSP + 1024 * q}')
    k.bg_issue(BURST)
    k.barrier()
    SR = BF + 24
    for w in range(4):
        for q in range(4):
            k.ds(f'ds_read_b128 {v(SR + 16 * w + 4 * q, 4)}, v1 offset:{LSP + 4096 * w + 1024 * q}', ('sp', w))
    for c in range(3):
        for m in range(2):
            for p in range(2):
                k.ds(f'ds_read_b64_tr_b16 {v(BF + 8 * c + 4 * m + 2 * p, 2)}, v8 '
                     f'offset:{LH + c * 2048 + m * 256 + p * 128}', ('vt', c, m))
    k.bg_issue(WB)
    k.wait_lg(('sp', 3))
    for r in range(0, 16, 2):
        k.op(f'v_pk_add_f32 {v(S_ + r, 2)}, {v(SR + r, 2)}, {v(SR + 16 + r, 2)}')
        k.op(f'v_pk_add_f32 {v(SR + 32 + r, 2)}, {v(SR + 32 + r, 2)}, {v(SR + 48 + r, 2)}')
    for r in range(0, 16, 2):
        k.op(f'v_pk_add_f32 {v(S_ + r, 2)}, {v(S_ + r, 2)}, {v(SR + 32 + r, 2)}')
    for i in range(4):
        k.op(f'v_cndmask_b32 {v(248 + i)}, {v(S_ + i)}, {v(S_ + 4 + i)}, s[22:23]')
    for i in range(4):
        k.op(f'v_cndmask_b32 {v(248 + i)}, {v(248 + i)}, {v(S_ + 8 + i)}, s[24:25]')
    for i in range(4):
        k.op(f'v_cndmask_b32 {v(248 + i)}, {v(248 + i)}, {v(S_ + 12 + i)}, s[26:27]')
    k.op('v_mov_b32 v252, s40')
    k.op('v_cndmask_b32 v251, v251, v252, s[28:29]')
    k.op('v_max3_f32 v252, v248, v249, v250')
    k.op('v_max_f32 v252, v252, v251')
    k.op('v_mov_b32 v253, v252')
    k.op('v_permlane32_swap_b32 v252, v253')
    k.op('v_max_f32 v252, v252, v253')
    for i in range(4):
        k.op(f'v_sub_f32 {v(248 + i)}, {v(248 + i)}, v252')
    for i in range(4):
        k.op(f'v_exp_f32 {v(248 + i)}, {v(248 + i)}')
    k.op('v_add_f32 v252, v248, v249')
    k.op('v_add_f32 v253, v250, v251')
    k.op('v_add_f32 v252, v252, v253')
    xhalf_sum(252, 253)
    k.op('v_rcp_f32 v252, v252')
    for i in range(4):
        k.op(f'v_mul_f32 {v(248 + i)}, {v(248 + i)}, v252')
    k.op('v_cvt_pk_bf16_f32 v252, v248, v249')
    k.op('v_cvt_pk_bf16_f32 v253, v250, v251')
    PF = BF + 88
    for g in range(4):
        for j in range(2):
            k.op(f'v_cndmask_b32 {v(PF + 2 * g + j)}, 0, {v(252 + j)}, s[{20 + 2 * g}:{21 + 2 * g}]')
    for c in range(3):
        for m in range(2):
            k.wait_lg(('vt', c, m))
            cc = '0' if m == 0 else v(ACC + 16 * c, 16)
            k.op(f'v_mfma_f32_32x32x16_bf16 {v(ACC + 16 * c, 16)}, {v(BF + 8 * c + 4 * m, 4)}, '
                 f'{v(PF + 4 * m, 4)}, {cc}')
    pack_acc()
    share(LO_)
    stamp(k, 4)
    gemm(1)
    stamp(k, 5)
    for j in range(0, 48, 2):
        k.op(f'v_pk_add_f32 {v(ACC + j, 2)}, {v(ACC + j, 2)}, {v(XF + j, 2)}')
    pack_acc()
    st_write(STA, True)
    ln_stats(LST2)
    ln_apply(ACC)
    st_write(STB, False)
    share(LH2)
    stamp(k, 6)

    def late_stores():
        st_store(STA, X1, True, XF)
        st_store(STB, H2, False, XF + 24)
    gemm(2, late_stores)
    stamp(k, 7)
    pack_acc()
    st_write(STC, False)
    k.barrier()
    st_store(STC, Q2, False, BF)
    if STAMP:
        k.wait_vm_all()
    stamp(k, 8)
    stamp(k, 15, real=True)
    k.label('K1_END')
    k.op('s_endpgm')
    return k.text(), descriptor('temporal_kernel', 256 + 4 * RING, 256, 80)


K2_LDS = 163840


def gen_k2():
    k = K()
    header(k, 'spatial_kernel')
    k.op('s_cmp_ge_u32 s2, 184')
    k.op('s_cbranch_scc1 K2_END')
    k.op('s_and_b32 s17, s2, 7')
    k.op('s_cmp_eq_u32 s17, 7')
    k.op('s_cbranch_scc1 K2_END')
    k.op('s_lshr_b32 s18, s2, 3')
    k.op('s_load_dwordx2 s[4:5], s[0:1], 40')
    k.op('s_load_dwordx2 s[6:7], s[0:1], 56')
    k.op('v_lshrrev_b32 v1, 6, v0')
    k.op('v_readfirstlane_b32 s16, v1')
    stamp_init(k, 182)
    stamp(k, 14, 14, 15, real=True)
    stamp(k, 12, 14, 15)
    k.op('v_and_b32 v8, 63, v0')
    k.op('v_lshlrev_b32 v1, 4, v8')
    k.op('v_and_b32 v9, 31, v8')
    k.op('v_lshrrev_b32 v10, 5, v8')
    k.op('s_mul_i32 s19, s16, 40960')
    k.op(f's_mul_i32 s20, s17, {FRAME}')
    k.op(f's_mul_i32 s21, s18, {TILE}')
    k.op('s_add_u32 s21, s21, s20')
    k.op(f's_mul_i32 s22, s16, {TILE}')
    k.op('s_add_u32 s22, s22, s20')
    k.op(f's_add_u32 s22, s22, {H2}')
    k.op('s_mul_i32 s28, s16, 73728')
    k.op('s_waitcnt lgkmcnt(0)')
    srd(k, 8, 4, XBYTES)
    srd(k, 12, 6, WS_BYTES)
    MREF, L_ = 6, 7
    S_, P_, O_ = 16, 32, 40
    KAD, VAD = 232, 240
    QA, KA, VA = 0, 96, 128
    KR, VR = 8, 8

    def blk_off(it, blk):
        return (it % 2) * 16384 + blk * 8192 if blk < 2 else 32768

    def dma1(it, blk, q):
        if q % 4 == 0:
            k.op(f's_add_u32 m0, s19, {blk_off(it, blk) + q * 1024}')
            k.op(f's_add_u32 s27, s22, {it * 4 * TILE + blk * 8192 + q * 1024}')
        k.vmem(f'buffer_load_dwordx4 v1, s[12:15], s27 offen offset:{(q % 4) * 1024} lds', ('kv', it, 0 if blk < 2 else 1))

    def dma(it, blks):
        for blk in blks:
            for q in range(8):
                k.bg.append((('kv', it, 0 if blk < 2 else 1), (lambda a_=blk, b_=q: dma1(it, a_, b_))))

    def wslot(idx):
        return 160 + 4 * idx if idx < 24 else (4 * (idx - 24) if idx < 64 else 160 + 4 * (idx - 64))

    def wload(idx):
        k.op(f's_add_u32 s29, s28, {W4 + idx * 1024}')
        k.vmem(f'buffer_load_dwordx4 {a(wslot(idx), 4)}, v1, s[12:15], s29 offen', ('w', idx))

    def wq(idx):
        k.bg.append((('w', idx), lambda: wload(idx)))

    k.op(f's_add_u32 s23, s21, {Q2}')
    k.op('s_mul_i32 s30, s16, 6144')
    for i in range(6):
        k.op(f's_add_u32 s31, s30, {i * 1024}')
        k.op('s_cmp_ge_u32 s31, 16384')
        k.op('s_cselect_b32 s35, 24576, 0')
        k.op('s_add_u32 s35, s35, 16384')
        k.op('s_add_u32 m0, s31, s35')
        k.op('s_add_u32 s32, s31, s23')
        k.vmem('buffer_load_dwordx4 v1, s[12:15], s32 offen lds', 'q')
    dma(0, [0])
    k.bg_flush()
    dma(0, [1, 2])
    k.bg_period = 40
    k.op('v_and_b32 v11, 3, v9')
    k.op('v_lshlrev_b32 v11, 2, v11')
    k.op('v_bfe_u32 v12, v9, 2, 2')
    k.op('v_or_b32 v11, v11, v12')
    k.op('v_xor_b32 v11, v11, v10')
    k.op('v_lshlrev_b32 v12, 8, v9')
    for e in range(8):
        k.op(f'v_xor_b32 v13, {2 * e}, v11')
        k.op(f'v_lshl_add_u32 {v(KAD + e)}, v13, 4, v12')
    k.op('v_and_b32 v11, 15, v8')
    k.op('v_lshrrev_b32 v12, 2, v11')
    k.op('v_lshl_add_u32 v13, v10, 2, v12')
    k.op('v_lshlrev_b32 v13, 8, v13')
    k.op('v_add_u32 v13, s19, v13')
    k.op('v_bfe_u32 v14, v11, 1, 1')
    k.op('v_lshl_add_u32 v13, v14, 3, v13')
    k.op('v_bfe_u32 v14, v8, 4, 1')
    k.op('v_and_b32 v15, 1, v11')
    k.op('v_lshl_add_u32 v14, v14, 1, v15')
    k.op('v_lshl_add_u32 v12, v12, 2, v10')
    k.op('v_xor_b32 v14, v14, v12')
    for c4 in range(4):
        k.op(f's_add_u32 s26, s16, {c4}')
        k.op('s_and_b32 s26, s26, 3')
        k.op('s_lshl_b32 s26, s26, 2')
        for p in range(2):
            k.op(f'v_xor_b32 v15, {2 * p}, v14')
            k.op('v_xor_b32 v15, s26, v15')
            k.op(f'v_lshl_add_u32 {v(VAD + 2 * c4 + p)}, v15, 4, v13')
            if p:
                k.op(f'v_add_u32 {v(VAD + 2 * c4 + p)}, 2048, {v(VAD + 2 * c4 + p)}')
    k.op(f's_mov_b32 s24, {f32hex(24.0)}')
    k.op('s_mov_b32 s25, 0xff800000')
    k.op(f'v_mov_b32 {v(L_)}, 0')
    stamp(k, 0, 14, 15)
    k.bg_issue(4)
    k.wait_vm('q')
    k.op('s_barrier')
    for kc in range(24):
        blk = kc // 8
        off = 16384 + blk * 8192 if blk < 2 else 57344
        k.ds(f'ds_read_b128 {a(QA + 4 * kc, 4)}, {v(KAD + kc % 8)} offset:{off}', ('qf', kc))
    for e in range(8):
        k.op(f'v_add_u32 {v(KAD + e)}, s19, {v(KAD + e)}')
    k.bg_flush()
    k.barrier()

    ct_order = [8, 9, 10, 11, 0, 1, 2, 3, 4, 5, 6, 7]
    wnext = 0
    for it in range(6):
        if it == 5:
            k.bg_flush()
            k.op('s_cmp_eq_u32 s16, 3')
            k.op('s_cbranch_scc1 K2_LOOPDONE')
        stamp(k, 1 + it, 14, 15)
        k.bg_period = 60
        if it < 5:
            dma(it + 1, [0, 1])
            if it >= 1:
                for _ in range(6):
                    wq(wnext); wnext += 1

        def kread(kc, it=it):
            k.ds(f'ds_read_b128 {a(KA + 4 * (kc % KR), 4)}, {v(KAD + kc % 8)} offset:{blk_off(it, kc // 8)}', ('k', kc))
        if it == 0 or it == 5:
            k.wait_vm(('kv', it, 0))
            for kc in range(KR - 2):
                kread(kc)
        for kc in range(24):
            nk = kc + KR - 2
            if nk < 24:
                if nk == 16:
                    k.wait_vm(('kv', it, 1))
                kread(nk)
            if kc % 2 == 0:
                k.wait_lg(('k', kc + 1))
            c = '0' if kc == 0 else v(S_, 16)
            k.op(f'v_mfma_f32_32x32x16_bf16 {v(S_, 16)}, {a(KA + 4 * (kc % KR), 4)}, {a(QA + 4 * kc, 4)}, {c}')
        vlist = [(m, ct) for m in range(2) for ct in ct_order]

        def vread(j):
            m, ct = vlist[j]
            for p in range(2):
                k.ds(f'ds_read_b64_tr_b16 {a(VA + 4 * (j % VR) + 2 * p, 2)}, {v(VAD + 2 * (ct % 4) + p)} '
                     f'offset:{blk_off(it, ct // 4) + m * 4096}', ('v', j))
        for j in range(VR - 2):
            vread(j)
        if it == 5:
            with k.nobg():
                k.op('s_cmp_lg_u32 s16, 2')
                k.op('s_cbranch_scc1 K2_NOMASK')
                snap = k.snapshot()
                for r in (13, 14, 15):
                    k.op(f'v_mov_b32 {v(S_ + r)}, s25')
                k.op('s_mov_b32 exec_lo, 0')
                k.op(f'v_mov_b32 {v(S_ + 12)}, s25')
                k.op('s_mov_b32 exec_lo, -1')
                k.nop(4)
                k.label('K2_NOMASK')
                k.restore(snap)
        k.op(f'v_max3_f32 v11, {v(S_)}, {v(S_ + 1)}, {v(S_ + 2)}')
        k.op(f'v_max3_f32 v12, {v(S_ + 3)}, {v(S_ + 4)}, {v(S_ + 5)}')
        k.op(f'v_max3_f32 v11, v11, {v(S_ + 6)}, {v(S_ + 7)}')
        k.op(f'v_max3_f32 v12, v12, {v(S_ + 8)}, {v(S_ + 9)}')
        k.op(f'v_max3_f32 v11, v11, {v(S_ + 10)}, {v(S_ + 11)}')
        k.op(f'v_max3_f32 v12, v12, {v(S_ + 12)}, {v(S_ + 13)}')
        k.op(f'v_max3_f32 v11, v11, {v(S_ + 14)}, {v(S_ + 15)}')
        k.op('v_max_f32 v11, v11, v12')
        k.op('v_mov_b32 v12, v11')
        k.op('v_permlane32_swap_b32 v11, v12')
        k.op('v_max_f32 v11, v11, v12')
        if it == 0:
            k.op(f'v_mov_b32 {v(MREF)}, v11')
        else:
            lab = k.newlabel('K2_NORESC')
            with k.nobg():
                k.op(f'v_sub_f32 v12, v11, {v(MREF)}')
                k.op('v_cmp_lt_f32 vcc, s24, v12')
                k.nop(2)
                k.op(f's_cbranch_vccz {lab}')
                snap = k.snapshot()
                clk0 = k.clk
                k.op(f'v_max_f32 v11, v11, {v(MREF)}')
                k.op(f'v_sub_f32 v12, {v(MREF)}, v11')
                k.op('v_exp_f32 v12, v12')
                k.op(f'v_mov_b32 {v(MREF)}, v11')
                k.op(f'v_mul_f32 {v(L_)}, {v(L_)}, v12')
                for r in range(192):
                    k.op(f'v_mul_f32 {v(O_ + r)}, {v(O_ + r)}, v12')
                k.nop(4)
                k.label(lab)
                k.restore(snap)
                k.clk = clk0
        for r in range(0, 8):
            k.op(f'v_sub_f32 {v(S_ + r)}, {v(S_ + r)}, {v(MREF)}')
        for r in range(0, 8):
            k.op(f'v_exp_f32 {v(S_ + r)}, {v(S_ + r)}')
        for r in range(0, 8, 2):
            k.op(f'v_cvt_pk_bf16_f32 {v(P_ + r // 2)}, {v(S_ + r)}, {v(S_ + r + 1)}')
        filler = []
        for r in range(8, 16):
            filler.append(f'v_sub_f32 {v(S_ + r)}, {v(S_ + r)}, {v(MREF)}')
        for r in range(8, 16):
            filler.append(f'v_exp_f32 {v(S_ + r)}, {v(S_ + r)}')
        for r in range(8, 16, 2):
            filler.append(f'v_cvt_pk_bf16_f32 {v(P_ + r // 2)}, {v(S_ + r)}, {v(S_ + r + 1)}')
        filler.append(f'v_add_f32 v11, {v(S_)}, {v(S_ + 1)}')
        filler.append(f'v_add_f32 v12, {v(S_ + 2)}, {v(S_ + 3)}')
        for r in range(4, 16, 2):
            filler.append(f'v_add_f32 v11, v11, {v(S_ + r)}')
            filler.append(f'v_add_f32 v12, v12, {v(S_ + r + 1)}')
        filler.append('v_add_f32 v11, v11, v12')
        filler.append(f'v_add_f32 {v(L_)}, {v(L_)}, v11')
        for j in range(24):
            m, ct = vlist[j]
            nj = j + VR - 2
            if nj < 24:
                vread(nj)
            if m == 1:
                while len(filler) > 16:
                    k.op(filler.pop(0))
            if j % 2 == 0:
                k.wait_lg(('v', j + 1))
            c = '0' if (it == 0 and m == 0) else v(O_ + 16 * ct, 16)
            k.op(f'v_mfma_f32_32x32x16_bf16 {v(O_ + 16 * ct, 16)}, {a(VA + 4 * (j % VR), 4)}, '
                 f'{v(P_ + 4 * m, 4)}, {c}')
            for _ in range(4):
                if filler:
                    k.op(filler.pop(0))
            if j == 15 and it < 5:
                k.bg_flush()
                k.bg_period = 30
                dma(it + 1, [2])
            if j == 20 and it < 4:
                k.wait_vm(('kv', it + 1, 0))
                for kc in range(KR - 2):
                    kread(kc, it + 1)
        while filler:
            k.op(filler.pop(0))
    k.bg_flush()
    k.nop(12)
    k.label('K2_LOOPDONE')
    k.nop(12)
    k.wait_vm_all()
    k.wait_lg_all()
    stamp(k, 7, 14, 15)
    k.bg_period = 60
    k.op('v_lshrrev_b32 v11, 3, v8')
    k.op('s_lshl_b32 s26, s16, 3')
    k.op('v_add_u32 v11, s26, v11')
    k.op('v_and_b32 v12, 7, v8')
    k.op('v_mul_u32_u24 v5, 784, v11')
    k.op('v_lshl_add_u32 v5, v12, 4, v5')
    k.op('v_mul_u32_u24 v13, 768, v11')
    k.op('v_lshl_add_u32 v13, v12, 4, v13')
    k.op(f's_add_u32 s26, s21, {X1}')
    XR = 232
    for j in range(6):
        k.vmem(f'buffer_load_dwordx4 {v(XR + 4 * j, 4)}, v13, s[12:15], s26 offen offset:{128 * j}', ('x1', j))
    with k.nobg():
        k.op('s_lshl_b32 s26, s18, 5')
        k.op('v_add_u32 v11, s26, v11')
        k.op('s_movk_i32 s27, 729')
        k.op('v_cmp_gt_u32 vcc, s27, v11')
        k.op('s_mul_i32 s27, s17, 729')
        k.op('s_add_u32 s27, s27, s26')
        k.op('s_mul_i32 s27, s27, 768')
        k.op('v_add_u32 v13, s27, v13')
        k.op(f'v_mov_b32 v12, {BIG}')
        k.op('v_cndmask_b32 v15, v12, v13, vcc')
    for idx in range(wnext, 64):
        wq(idx)
    k.op(f'v_mov_b32 v12, {v(L_)}')
    k.op(f'v_permlane32_swap_b32 {v(L_)}, v12')
    k.op(f'v_add_f32 {v(L_)}, {v(L_)}, v12')
    k.op('v_lshlrev_b32 v11, 3, v9')
    k.op('v_add_u32 v12, s19, v11')
    k.ds(f'ds_write_b64 v12, {v(MREF, 2)} offset:36864')
    k.op('v_add_u32 v13, s19, v1')
    for e in range(1, 4):
        for b in range(3):
            for q in range(4):
                k.ds(f'ds_write_b128 v13, {v(O_ + 16 * (4 * b + e) + 4 * q, 4)} '
                     f'offset:{(e - 1) * 12288 + b * 4096 + q * 1024}')
    for e in range(1, 4):
        k.op(f's_sub_u32 s26, s16, {e}')
        k.op('s_and_b32 s26, s26, 3')
        k.op('s_mul_i32 s26, s26, 40960')
        k.op(f'v_add_u32 v{1 + e}, s26, v1')
        k.op(f'v_add_u32 {v(P_ + e)}, s26, v11')
    k.bg_issue(8)
    k.barrier()
    k.op(f'v_mov_b32 {v(S_)}, {v(MREF)}')
    k.op(f'v_mov_b32 {v(S_ + 1)}, {v(L_)}')
    for e in range(1, 4):
        k.ds(f'ds_read_b64 {v(S_ + 2 * e, 2)}, {v(P_ + e)} offset:36864', 'st')
    PKR = 16
    for e in range(1, 4):
        for b in range(3):
            for q in range(4):
                k.ds(f'ds_read_b128 {v(O_ + 16 * (4 * b + e) + 4 * q, 4)}, v{1 + e} '
                     f'offset:{(e - 1) * 12288 + b * 4096 + q * 1024}', ('p', e))
    k.wait_lg('st')
    k.op(f'v_max3_f32 v12, {v(S_)}, {v(S_ + 2)}, {v(S_ + 4)}')
    k.op(f'v_max_f32 v12, v12, {v(S_ + 6)}')
    for w in range(4):
        k.op(f'v_sub_f32 {v(S_ + 2 * w)}, {v(S_ + 2 * w)}, v12')
    for w in range(4):
        k.op(f'v_exp_f32 {v(S_ + 2 * w)}, {v(S_ + 2 * w)}')
    k.op(f'v_mul_f32 v13, {v(S_)}, {v(S_ + 1)}')
    for w in range(1, 4):
        k.op(f'v_fmac_f32 v13, {v(S_ + 2 * w)}, {v(S_ + 2 * w + 1)}')
    k.op('v_rcp_f32 v13, v13')
    for w in range(4):
        k.op(f'v_mul_f32 {v(S_ + 2 * w)}, {v(S_ + 2 * w)}, v13')
    for b in range(3):
        for r in range(0, 16, 2):
            o = O_ + 64 * b + r
            k.op(f'v_pk_mul_f32 {v(o, 2)}, {v(o, 2)}, {v(S_, 2)} op_sel_hi:[1,0]')
    for e in range(1, 4):
        k.wait_lg(('p', e))
        for b in range(3):
            for r in range(0, 16, 2):
                o = O_ + 64 * b + r
                k.op(f'v_pk_fma_f32 {v(o, 2)}, {v(o + 16 * e, 2)}, {v(S_ + 2 * e, 2)}, {v(o, 2)} op_sel_hi:[1,0,1]')
    for b in range(3):
        for j in range(8):
            o = O_ + 64 * b + 2 * j
            k.op(f'v_cvt_pk_bf16_f32 {v(PKR + 8 * b + j)}, {v(o)}, {v(o + 1)}')
    for b in range(3):
        for h in range(2):
            k.ds(f'ds_write_b128 v4, {v(PKR + 8 * b + 4 * h, 4)} offset:{24576 + 2048 * b + 1024 * h}')
    for x in range(1, 4):
        k.op(f'v_add_u32 v{1 + x}, {40960 * x}, v1')
    k.bg_flush()
    k.barrier()
    BF = 40
    stamp(k, 8, 13, 14)
    for kc in range(24):
        own = (kc % 8) // 2
        x = (own + 1) % 4
        k.ds(f'ds_read_b128 {v(BF + 4 * kc, 4)}, v{1 + x} offset:{24576 + 2048 * (kc // 8) + 1024 * (kc % 2)}', ('b', kc))
    k.op('v_mul_u32_u24 v11, 784, v9')
    k.op('s_mul_i32 s27, s16, 192')
    k.op('v_add_u32 v11, s27, v11')
    k.op('v_lshl_add_u32 v11, v10, 3, v11')
    ACC = 136
    for jt in range(3):
        for kc in range(24):
            idx = jt * 24 + kc
            k.wait_vm(('w', idx))
            if jt == 0:
                k.wait_lg(('b', kc))
            c = '0' if kc == 0 else v(ACC + 16 * jt, 16)
            k.op(f'v_mfma_f32_32x32x16_bf16 {v(ACC + 16 * jt, 16)}, {a(wslot(idx), 4)}, {v(BF + 4 * kc, 4)}, {c}')
            if idx < 8:
                wload(idx + 64)
    stamp(k, 9, 13, 14)
    for j in range(24):
        k.op(f'v_cvt_pk_bf16_f32 {v(PKR + j)}, {v(ACC + 2 * j)}, {v(ACC + 2 * j + 1)}')
        if j % 2:
            i, h = j // 4, (j // 2) % 2
            k.ds(f'ds_write_b64 v11, {v(PKR + 4 * i + 2 * h, 2)} offset:{32 * i + 16 * h}')
    k.barrier()
    DR = 40
    for j in range(6):
        k.ds(f'ds_read_b128 {v(DR + 4 * j, 4)}, v5 offset:{128 * j}', ('d', j))
    k.op('s_mov_b32 s27, 0xffff0000')
    k.wait_vm(('x1', 5))
    for j in range(6):
        k.wait_lg(('d', j))
        for q in range(4):
            r = 4 * j + q
            t0 = 64 + 4 * (q % 2)
            k.op(f'v_lshlrev_b32 {v(t0)}, 16, {v(XR + r)}')
            k.op(f'v_and_b32 {v(t0 + 1)}, s27, {v(XR + r)}')
            k.op(f'v_lshlrev_b32 {v(t0 + 2)}, 16, {v(DR + r)}')
            k.op(f'v_and_b32 {v(t0 + 3)}, s27, {v(DR + r)}')
            k.op(f'v_pk_add_f32 {v(t0, 2)}, {v(t0, 2)}, {v(t0 + 2, 2)}')
            k.op(f'v_cvt_pk_bf16_f32 {v(DR + r)}, {v(t0)}, {v(t0 + 1)}')
        k.vmem(f'buffer_store_dwordx4 {v(DR + 4 * j, 4)}, v15, s[8:11], 0 offen offset:{128 * j} sc1')
    if STAMP:
        k.wait_vm_all()
    stamp(k, 10, 13, 14)
    stamp(k, 15, 13, 14, real=True)
    k.label('K2_END')
    k.op('s_endpgm')
    return k.text(), descriptor('spatial_kernel', 512, 256, 80)


def main():
    out = []
    out.append(f'; @launch kernel=fold_kernel grid=(144,1,1) block=(256,1,1) lds={K0_LDS}')
    out.append(f'; @launch kernel=temporal_kernel grid=(183,1,1) block=(256,1,1) lds={K1_LDS}')
    out.append(f'; @launch kernel=spatial_kernel grid=(184,1,1) block=(256,1,1) lds={K2_LDS}')
    out.append('.amdgcn_target "amdgcn-amd-amdhsa--gfx950"')
    out.append('.text')
    descs = []
    for g in (gen_k0, gen_k1, gen_k2):
        t, d = g()
        out.append(t)
        descs.append(d)
    out.append('.section .rodata,"a"')
    for d in descs:
        out.append('.p2align 6')
        out.append(d)
    open(sys.argv[1], 'w').write('\n'.join(out) + '\n')


if __name__ == '__main__':
    main()
```

```python
import sys, os, struct
sys.path.insert(0, os.path.dirname(__file__))
from asmlib import K, v, a, s

T, N, C = 7, 729, 384
W1, W2, W3, W4 = 0, 0x48000, 0x90000, 0xD8000
H2, Q2, X1 = 0x200000, 0x600000, 0xA00000
H1 = 0xE00000
TILE = 24576
FRAME = 23 * TILE
XBYTES = T * N * C * 2
WS_BYTES = 0x10000000
BIG = 0x7F000000
SCALE_LOG2E = (C ** -0.5) * 1.4426950408889634
STAMP = os.environ.get('STAMP', '0') == '1'


def f32hex(x):
    return '0x%08x' % struct.unpack('<I', struct.pack('<f', x))[0]


def srd(k, base, ptr, nbytes):
    k.op(f's_mov_b32 s{base}, s{ptr}')
    k.op(f's_and_b32 s{base + 1}, s{ptr + 1}, 0xffff')
    k.op(f's_mov_b32 s{base + 2}, {nbytes}')
    k.op(f's_mov_b32 s{base + 3}, 0x00020000')


def stamp_init(k, lastwg=182):
    if not STAMP:
        return
    with k.nobg():
        k.op('s_load_dwordx2 s[60:61], s[0:1], 48')
        k.op('s_waitcnt lgkmcnt(0)')
        k.lg = []
        srd(k, 64, 60, 256)
        k.op('s_mov_b32 s70, 0x1000')
        k.op('s_or_b32 s69, s2, s16')
        k.op('s_cmp_eq_u32 s69, 0')
        k.op('s_cselect_b32 s70, 0, s70')
        k.op(f's_xor_b32 s69, s2, {lastwg}')
        k.op('s_or_b32 s69, s69, s16')
        k.op('s_cmp_eq_u32 s69, 0')
        k.op('s_cselect_b32 s70, 128, s70')


def stamp(k, idx, r0=254, r1=255, real=False):
    if not STAMP:
        return
    with k.nobg():
        k.op('s_waitcnt lgkmcnt(0)')
        k.lg = []
        k.op('s_memrealtime s[62:63]' if real else 's_memtime s[62:63]')
        k.op('s_waitcnt lgkmcnt(0)')
        k.op(f's_add_u32 s69, s70, {4 * idx}')
        k.op(f'v_mov_b32 v{r1}, s62')
        k.op(f'v_mov_b32 v{r0}, s69')
        k.vmem(f'buffer_store_dword v{r1}, v{r0}, s[64:67], 0 offen')


def header(k, name):
    k.raw(f'.globl {name}')
    k.raw('.p2align 8')
    k.raw(f'.type {name},@function')
    k.raw(f'{name}:')


def descriptor(name, nvgpr, accum, nsgpr):
    return f'''.amdhsa_kernel {name}
  .amdhsa_next_free_vgpr {nvgpr}
  .amdhsa_next_free_sgpr {nsgpr}
  .amdhsa_accum_offset {accum}
  .amdhsa_group_segment_fixed_size 0
  .amdhsa_kernarg_size 64
  .amdhsa_user_sgpr_count 2
  .amdhsa_user_sgpr_kernarg_segment_ptr 1
  .amdhsa_system_sgpr_workgroup_id_x 1
  .amdhsa_float_denorm_mode_32 3
.end_amdhsa_kernel'''


K0_LDS = 98304


NFOLD = 72
FLAG = 240
READY = 112


def gen_fold(k):
    k.label('K0_FOLD')
    k.op('s_load_dwordx4 s[4:7], s[0:1], 8')
    k.op('s_load_dwordx4 s[8:11], s[0:1], 24')
    k.op('s_load_dwordx4 s[48:51], s[0:1], 48')
    k.op('v_lshrrev_b32 v1, 6, v0')
    k.op('v_readfirstlane_b32 s16, v1')
    if STAMP:
        stamp_init(k, 100000)
        k.op('s_cmp_eq_u32 s70, 0')
        k.op('s_cselect_b32 s70, 64, s70')
        k.op('s_mov_b32 s71, 0')
        stamp(k, 14, 30, 31, real=True)
        stamp(k, 12, 30, 31)
    k.op('v_and_b32 v1, 63, v0')
    k.op('s_cmp_ge_u32 s2, 36')
    k.op('s_cselect_b32 s14, 1, 0')
    k.op('s_mul_i32 s15, s14, 36')
    k.op('s_sub_u32 s15, s2, s15')
    k.op('s_mul_hi_u32 s17, s15, 0x2AAAAAAB')
    k.op('s_mul_i32 s18, s17, 6')
    k.op('s_sub_u32 s18, s15, s18')
    k.op('s_mov_b32 s19, s14')
    k.op('s_mul_i32 s36, s16, 768')
    k.op('s_lshl_b32 s37, s17, 6')
    k.op('s_mul_i32 s37, s37, 2304')
    k.op('s_mul_i32 s38, s19, 1536')
    k.op('s_add_u32 s37, s37, s38')
    k.op('s_lshl_b32 s38, s18, 6')
    k.op('s_mul_i32 s38, s38, 2304')
    k.op('s_add_u32 s38, s38, 768')
    k.op('s_mov_b32 s39, 0x05555556')
    k.op('s_movk_i32 s40, 2304')
    k.op('s_mul_i32 s41, s16, 12288')
    for u in range(12):
        k.op(f'v_add_u32 v2, s36, v1')
        if u:
            k.op(f'v_add_u32 v2, {64 * u}, v2')
        k.op('v_mul_hi_u32 v3, v2, s39')
        k.op('v_mul_u32_u24 v4, 48, v3')
        k.op('v_sub_u32 v4, v2, v4')
        k.op('v_xor_b32 v5, v4, v3')
        k.op('v_and_b32 v5, 15, v5')
        k.op('v_and_b32 v4, 48, v4')
        k.op('v_or_b32 v4, v4, v5')
        k.op('v_mul_lo_u32 v3, v3, s40')
        k.op(f'v_lshl_add_u32 {v(16 + u)}, v4, 4, v3')
    k.op('v_lshrrev_b32 v28, 3, v1')
    k.op('v_mul_u32_u24 v28, 768, v28')
    k.op('v_and_b32 v3, 7, v1')
    k.op('v_lshl_add_u32 v28, v3, 4, v28')
    k.op('s_lshl_b32 s43, s18, 7')
    k.op('s_mul_i32 s44, s16, 73728')
    k.op('s_add_u32 s43, s43, s44')
    k.op('s_lshr_b32 s45, s16, 1')
    k.op('s_and_b32 s46, s16, 1')
    k.op('v_and_b32 v2, 31, v1')
    k.op('v_lshrrev_b32 v3, 5, v1')
    k.op('s_lshl_b32 s47, s45, 5')
    k.op('v_add_u32 v4, s47, v2')
    k.op('v_xor_b32 v5, v3, v4')
    k.op('v_and_b32 v5, 15, v5')
    k.op('v_mul_u32_u24 v4, 768, v4')
    for e in range(8):
        k.op(f'v_xor_b32 v6, {2 * e}, v5')
        k.op(f'v_lshl_add_u32 {v(32 + e)}, v6, 4, v4')
    k.op('s_lshl_b32 s47, s46, 5')
    k.op('v_add_u32 v4, s47, v2')
    k.op('v_xor_b32 v5, v3, v4')
    k.op('v_and_b32 v5, 15, v5')
    k.op('v_mul_u32_u24 v4, 768, v4')
    k.op('v_add_u32 v4, 49152, v4')
    for e in range(8):
        k.op(f'v_xor_b32 v6, {2 * e}, v5')
        k.op(f'v_lshl_add_u32 {v(40 + e)}, v6, 4, v4')
    k.op('v_and_b32 v6, 15, v1')
    k.op('v_lshrrev_b32 v7, 2, v6')
    k.op('v_lshl_add_u32 v7, v3, 3, v7')
    k.op('v_lshlrev_b32 v7, 7, v7')
    k.op('v_and_b32 v8, 3, v6')
    k.op('v_lshl_add_u32 v7, v8, 3, v7')
    k.op('v_bfe_u32 v8, v1, 4, 1')
    k.op('v_lshl_add_u32 v7, v8, 5, v7')
    k.op('s_lshl_b32 s47, s46, 6')
    k.op('s_add_u32 s47, s47, 49152')
    k.op('v_add_u32 v7, s47, v7')
    k.op('v_lshlrev_b32 v29, 4, v1')
    k.op('s_lshl_b32 s52, s18, 1')
    k.op('s_add_u32 s52, s52, s46')
    k.op('s_mul_i32 s52, s52, 24')
    k.op('s_lshl_b32 s53, s17, 1')
    k.op('s_add_u32 s53, s53, s45')
    k.op('s_lshl_b32 s53, s53, 1')
    k.op('s_add_u32 s52, s52, s53')
    k.op('s_lshl_b32 s52, s52, 10')
    k.op('s_waitcnt lgkmcnt(0)')
    srd(k, 32, 50, WS_BYTES)
    srd(k, 56, 48, 256)
    k.op('s_mov_b32 s20, s4')
    k.op('s_mov_b32 s21, s5')
    k.op('s_mov_b32 s22, s6')
    k.op('s_mov_b32 s23, s7')
    k.label('K0_PASS')
    if STAMP:
        k.op('s_add_u32 s70, s70, s71')
        stamp(k, 0, 30, 31)
    srd(k, 24, 20, C * 3 * C * 2)
    srd(k, 28, 22, C * C * 2)
    for u in range(12):
        k.op(f's_add_u32 m0, s41, {u * 1024}')
        k.op(f'buffer_load_dwordx4 {v(16 + u)}, s[24:27], s37 offen lds')
    k.op('s_cmp_eq_u32 s19, 1')
    k.op('s_cbranch_scc1 K0_VO')
    for u in range(12):
        k.op(f's_add_u32 m0, s41, {49152 + u * 1024}')
        k.op(f'buffer_load_dwordx4 {v(16 + u)}, s[24:27], s38 offen lds')
    k.op('s_branch K0_ST')
    k.label('K0_VO')
    for u in range(12):
        k.op(f's_add_u32 m0, s41, {49152 + u * 1024}')
        k.op(f's_add_u32 s44, s43, {u * 6144}')
        k.op('buffer_load_dwordx4 v28, s[28:31], s44 offen lds')
    k.label('K0_ST')
    stamp(k, 1, 30, 31)
    k.op('s_waitcnt vmcnt(0)')
    stamp(k, 2, 30, 31)
    k.op('s_barrier')
    AF, BF, D = 48, 144, 240
    for cc in range(24):
        k.op(f'ds_read_b128 {v(AF + 4 * cc, 4)}, {v(32 + cc % 8)} offset:{(cc // 8) * 256}')
    k.op('s_cmp_eq_u32 s19, 1')
    k.op('s_cbranch_scc1 K0_VO2')
    for cc in range(24):
        k.op(f'ds_read_b128 {v(BF + 4 * cc, 4)}, {v(40 + cc % 8)} offset:{(cc // 8) * 256}')
    k.op(f's_mov_b32 s40, {f32hex(SCALE_LOG2E)}')
    k.op('s_branch K0_MM')
    k.label('K0_VO2')
    for cc in range(24):
        for p in range(2):
            k.op(f'ds_read_b64_tr_b16 {v(BF + 4 * cc + 2 * p, 2)}, v7 offset:{cc * 2048 + p * 512}')
    k.op('s_mov_b32 s40, 1.0')
    k.label('K0_MM')
    k.op('s_waitcnt lgkmcnt(0)')
    for cc in range(24):
        c = '0' if cc == 0 else v(D, 16)
        k.op(f'v_mfma_f32_32x32x16_bf16 {v(D, 16)}, {v(AF + 4 * cc, 4)}, {v(BF + 4 * cc, 4)}, {c}')
    for r in range(16):
        k.op(f'v_mul_f32 {v(D + r)}, s40, {v(D + r)}')
    for r in range(8):
        k.op(f'v_cvt_pk_bf16_f32 {v(8 + r)}, {v(D + 2 * r)}, {v(D + 2 * r + 1)}')
    k.op(f's_mul_i32 s36, s14, {W2}')
    k.op('s_add_u32 s36, s36, s52')
    k.op('buffer_store_dwordx4 v[8:11], v29, s[32:35], s36 offen sc1')
    k.op('buffer_store_dwordx4 v[12:15], v29, s[32:35], s36 offen offset:1024 sc1')
    stamp(k, 3, 30, 31)
    k.op('s_waitcnt vmcnt(0)')
    stamp(k, 4, 30, 31)
    k.op('s_barrier')
    if STAMP:
        k.op('s_mov_b32 s71, 20')
    k.op('s_cmp_lg_u32 s16, 0')
    k.op('s_cbranch_scc1 K0_NOPUB')
    k.op('s_lshl_b32 s36, s14, 2')
    k.op(f's_add_u32 s36, s36, {FLAG}')
    k.op('v_mov_b32 v2, 1')
    k.op('v_mov_b32 v3, 0')
    k.op('s_mov_b64 exec, 1')
    k.op('buffer_atomic_add v2, v3, s[56:59], s36 offen sc0 sc1')
    k.op('s_waitcnt vmcnt(0)')
    k.op('v_readfirstlane_b32 s47, v2')
    k.op('s_cmp_lg_u32 s47, 35')
    k.op('s_cbranch_scc1 K0_NOTLAST')
    k.op(f's_sub_u32 s36, s36, {FLAG - READY}')
    k.op('v_mov_b32 v2, 36')
    k.op('buffer_store_dword v2, v3, s[56:59], s36 offen sc1')
    k.label('K0_NOTLAST')
    k.op('s_mov_b64 exec, -1')
    k.label('K0_NOPUB')
    k.op('s_cmp_ge_u32 s14, 2')
    k.op('s_cbranch_scc1 K0_ZERO')
    k.op('s_add_u32 s14, s14, 2')
    k.op('s_mov_b32 s20, s8')
    k.op('s_mov_b32 s21, s9')
    k.op('s_mov_b32 s22, s10')
    k.op('s_mov_b32 s23, s11')
    k.nop(16)
    k.op('s_branch K0_PASS')
    k.label('K0_ZERO')
    k.op('s_cmp_ge_u32 s2, 21')
    k.op('s_cbranch_scc1 K1_END')
    k.op('s_mul_hi_u32 s36, s2, 0x55555556')
    k.op('s_mul_i32 s37, s36, 3')
    k.op('s_sub_u32 s37, s2, s37')
    k.op('s_lshl_b32 s37, s37, 13')
    k.op(f's_mul_i32 s38, s36, {FRAME}')
    k.op('s_add_u32 s38, s38, s37')
    k.op(f's_add_u32 s38, s38, {H2 + 22 * TILE + 25 * 256}')
    k.op('v_lshlrev_b32 v2, 4, v0')
    k.op('s_movk_i32 s39, 1792')
    k.op('v_cmp_gt_u32 vcc, s39, v2')
    k.op(f'v_mov_b32 v3, {BIG}')
    k.op('v_cndmask_b32 v2, v3, v2, vcc')
    k.op('v_mov_b32 v4, 0')
    k.op('v_mov_b32 v5, 0')
    k.op('v_mov_b32 v6, 0')
    k.op('v_mov_b32 v7, 0')
    k.op('buffer_store_dwordx4 v[4:7], v2, s[32:35], s38 offen sc1')
    k.op('s_endpgm')


LH, LO_, LH2, LSP, LST1, LST2 = 0, 24576, 0, 49152, 0, 1024
STA, STB, STC = 0, 25088, 50176
K1_LDS = 67584 + 3 * 25088
RING = 60
LOOKAHEAD = 16
BURST = int(os.environ.get('BURST', '6'))
WB = int(os.environ.get('WB', '0'))
PER = int(os.environ.get('PER', '60'))


def gen_k1():
    k = K()
    header(k, 'temporal_kernel')
    k.op(f's_cmp_ge_u32 s2, {183 + NFOLD}')
    k.op('s_cbranch_scc1 K1_END')
    k.op(f's_cmp_lt_u32 s2, {NFOLD}')
    k.op('s_cbranch_scc1 K0_FOLD')
    k.op(f's_sub_u32 s2, s2, {NFOLD}')
    k.op('s_load_dwordx2 s[4:5], s[0:1], 0')
    k.op('s_load_dwordx4 s[48:51], s[0:1], 48')
    k.op('v_lshrrev_b32 v1, 6, v0')
    k.op('v_readfirstlane_b32 s16, v1')
    stamp_init(k, 182)
    stamp(k, 14, real=True)
    stamp(k, 12)
    k.op('v_and_b32 v10, 63, v0')
    k.op('v_lshlrev_b32 v1, 4, v10')
    k.op('v_and_b32 v11, 31, v10')
    k.op('v_lshrrev_b32 v12, 5, v10')
    k.op('v_lshrrev_b32 v13, 3, v11')
    k.op('v_and_b32 v14, 7, v11')
    k.op('s_lshl_b32 s18, s2, 2')
    k.op('v_add_u32 v15, s18, v13')
    k.op('v_cmp_gt_u32 s[30:31], 7, v14')
    k.op('s_movk_i32 s19, 729')
    k.op('v_cmp_gt_u32 s[32:33], s19, v15')
    k.op('s_and_b64 s[30:31], s[30:31], s[32:33]')
    k.op('v_mul_lo_u32 v2, v14, s19')
    k.op('v_add_u32 v2, v2, v15')
    k.op('s_movk_i32 s19, 768')
    k.op('v_mul_lo_u32 v2, v2, s19')
    k.op('v_lshl_add_u32 v2, v12, 3, v2')
    k.op('s_mul_i32 s19, s16, 192')
    k.op('v_add_u32 v2, s19, v2')
    k.op(f'v_mov_b32 v248, {BIG}')
    k.op('v_cndmask_b32 v2, v248, v2, s[30:31]')
    k.op('s_mul_i32 s17, s16, 73728')
    k.op('s_waitcnt lgkmcnt(0)')
    srd(k, 8, 4, XBYTES)
    srd(k, 12, 50, WS_BYTES)
    srd(k, 56, 48, 256)
    XF, ACC, PK, BF, S_ = 16, 64, 112, 136, 232
    GA = 13
    for i in range(6):
        for h in range(2):
            k.vmem(f'buffer_load_dwordx2 {v(PK + 4 * i + 2 * h, 2)}, v2, s[8:11], 0 offen offset:{32 * i + 16 * h}',
                   ('x', i, h))
    segs = [W1, W2, W3]

    def gate(seg):
        lab = k.newlabel('K1_POLL')
        done = k.newlabel('K1_PD')
        if seg == 0:
            k.op('s_cmp_lg_u32 s16, 0')
            k.op(f's_cbranch_scc1 {done}')
        k.op(f'v_mov_b32 v10, {READY + 4 * seg}')
        k.op('s_mov_b32 s46, 400000')
        k.label(lab)
        k.op('buffer_load_dword v11, v10, s[56:59], 0 offen sc1')
        k.op('s_waitcnt vmcnt(0)')
        k.vm = []
        k.op('v_readfirstlane_b32 s47, v11')
        k.op('s_cmp_ge_u32 s47, 36')
        k.op(f's_cbranch_scc1 {done}')
        k.op('s_sleep 8')
        k.op('s_sub_u32 s46, s46, 1')
        k.op('s_cmp_lg_u32 s46, 0')
        k.op(f's_cbranch_scc1 {lab}')
        k.label(done)
        if seg == 0:
            k.op('s_waitcnt vmcnt(0)')
            k.op('s_barrier')

    def wload(idx):
        seg, kk = idx // 72, idx % 72
        if kk == 0:
            gate(seg)
        if kk % 4 == 0:
            k.op(f's_add_u32 s18, s17, {segs[seg] + kk * 1024}')
        k.vmem(f'buffer_load_dwordx4 {a(4 * (idx % RING), 4)}, v1, s[12:15], s18 offen offset:{(kk % 4) * 1024} sc1',
               ('w', idx))

    def wq(idx):
        k.bg.append((('w', idx), lambda: wload(idx)))

    for idx in range(RING):
        wq(idx)
    k.bg_period = PER
    k.hold += 1

    with k.nobg():
        for g in range(4):
            k.op(f'v_cmp_eq_u32 s[{20 + 2 * g}:{21 + 2 * g}], {g}, v13')
    k.op('v_mul_u32_u24 v3, 784, v11')
    k.op('v_add_u32 v3, 0x10800, v3')
    k.op('s_mul_i32 s19, s16, 192')
    k.op('v_add_u32 v3, s19, v3')
    k.op('v_lshl_add_u32 v4, v12, 3, v3')
    k.op('v_lshl_add_u32 v3, v12, 4, v3')
    k.op('v_lshrrev_b32 v249, 3, v10')
    k.op('v_and_b32 v250, 7, v10')
    k.op('s_lshl_b32 s19, s16, 3')
    k.op('v_add_u32 v251, s19, v249')
    k.op('v_mul_u32_u24 v5, 784, v251')
    k.op('v_lshl_add_u32 v5, v250, 4, v5')
    k.op('v_add_u32 v5, 0x10800, v5')
    k.op('s_lshl_b32 s42, s2, 2')
    k.op('s_add_u32 s42, s42, s16')
    k.op('s_and_b32 s43, s42, 3')
    k.op('s_lshl_b32 s43, s43, 2')
    k.op('s_bfe_u32 s44, s42, 0x20002')
    k.op('s_or_b32 s43, s43, s44')
    k.op(f'v_mul_u32_u24 v253, {736 * 768 // 256}, v249')
    k.op('v_lshlrev_b32 v253, 8, v253')
    k.op('s_mul_i32 s44, s42, 768')
    k.op('v_add_u32 v253, s44, v253')
    with k.nobg():
        k.op('v_cmp_gt_u32 s[32:33], 7, v249')
        k.op('s_cmp_lt_u32 s42, 729')
        k.op('s_cselect_b64 s[32:33], s[32:33], 0')
    k.op('v_cndmask_b32 v253, v248, v253, s[32:33]')
    k.op('v_lshl_add_u32 v13, v250, 4, v253')
    k.op('s_lshr_b32 s45, s42, 5')
    k.op(f's_mul_i32 s45, s45, {TILE}')
    k.op('s_and_b32 s46, s42, 31')
    k.op('s_lshl_b32 s46, s46, 8')
    k.op('s_add_u32 s45, s45, s46')
    k.op('s_sub_u32 s45, s45, s44')
    k.op('v_add_u32 v253, s45, v253')
    k.op('v_xor_b32 v251, s43, v250')
    k.op('v_lshl_add_u32 v14, v251, 4, v253')
    k.op('v_xor_b32 v251, 8, v251')
    k.op('v_lshl_add_u32 v15, v251, 4, v253')
    k.op('v_lshlrev_b32 v7, 3, v11')
    k.op('v_add_u32 v7, 0x10000, v7')
    k.op('s_lshl_b32 s19, s16, 8')
    k.op('v_add_u32 v6, s19, v7')
    k.op('v_and_b32 v249, 15, v10')
    k.op('v_lshrrev_b32 v250, 2, v249')
    k.op('v_lshl_add_u32 v250, v12, 2, v250')
    k.op('v_lshlrev_b32 v8, 4, v250')
    k.op('v_bfe_u32 v250, v10, 4, 1')
    k.op('v_lshl_add_u32 v8, v250, 10, v8')
    k.op('v_and_b32 v250, 1, v249')
    k.op('v_lshl_add_u32 v8, v250, 9, v8')
    k.op('v_bfe_u32 v250, v249, 1, 1')
    k.op('v_lshl_add_u32 v8, v250, 3, v8')
    k.op('s_mul_i32 s19, s16, 6144')
    k.op('v_add_u32 v8, s19, v8')
    k.op('v_add_u32 v9, s19, v1')
    k.op('s_mov_b32 s28, 0')
    k.op('s_mov_b32 s29, -1')
    k.op('s_mov_b32 s34, 0xffff0000')
    k.op('s_mov_b32 s35, 0x3f803f80')
    k.op(f's_mov_b32 s36, {f32hex(1.0 / 384)}')
    k.op(f's_mov_b32 s37, {f32hex(1e-5)}')
    k.op('s_mov_b32 s40, 0xff800000')

    def unpack():
        for j in range(24):
            k.op(f'v_lshlrev_b32 {v(XF + 2 * j)}, 16, {v(PK + j)}')
            k.op(f'v_and_b32 {v(XF + 2 * j + 1)}, s34, {v(PK + j)}')

    def xhalf_sum(r, tmp):
        k.op(f'v_mov_b32 {v(tmp)}, {v(r)}')
        k.op(f'v_permlane32_swap_b32 {v(r)}, {v(tmp)}')
        k.op(f'v_add_f32 {v(r)}, {v(r)}, {v(tmp)}')

    def ln_stats(st):
        for c in range(4):
            k.op(f'v_mov_b32 {v(248 + c)}, 0')
        for j in range(24):
            c = j % 2
            k.op(f'v_dot2c_f32_bf16 {v(248 + c)}, s35, {v(PK + j)}')
            k.op(f'v_dot2c_f32_bf16 {v(250 + c)}, {v(PK + j)}, {v(PK + j)}')
        k.op('v_add_f32 v248, v248, v249')
        k.op('v_add_f32 v249, v250, v251')
        k.op('v_mov_b32 v250, v248')
        k.op('v_mov_b32 v251, v249')
        k.op('v_permlane32_swap_b32 v248, v250')
        k.op('v_permlane32_swap_b32 v249, v251')
        k.op('v_add_f32 v248, v248, v250')
        k.op('v_add_f32 v249, v249, v251')
        k.ds(f'ds_write_b64 v6, v[248:249] offset:{st}')
        if not k.hold:
            k.bg_issue(BURST)
        k.barrier()
        for w in range(4):
            k.ds(f'ds_read_b64 {v(S_ + 2 * w, 2)}, v7 offset:{st + 256 * w}', 'st')

    def ln_apply(src):
        k.bg_issue(WB)
        k.wait_lg('st')
        k.op(f'v_pk_add_f32 v[248:249], {v(S_, 2)}, {v(S_ + 2, 2)}')
        k.op(f'v_pk_add_f32 v[250:251], {v(S_ + 4, 2)}, {v(S_ + 6, 2)}')
        k.op('v_pk_add_f32 v[248:249], v[248:249], v[250:251]')
        k.op('v_mul_f32 v248, s36, v248')
        k.op('v_mul_f32 v249, s36, v249')
        k.op('v_fma_f32 v249, -v248, v248, v249')
        k.op('v_max_f32 v249, 0, v249')
        k.op('v_add_f32 v249, s37, v249')
        k.op('v_rsq_f32 v250, v249')
        k.op('v_mul_f32 v252, v248, v250')
        for j in range(24):
            tp = 254 if j % 2 else 248
            k.op(f'v_pk_fma_f32 {v(tp, 2)}, {v(src + 2 * j, 2)}, v[250:251], v[252:253] '
                 f'op_sel_hi:[1,0,0] neg_lo:[0,0,1] neg_hi:[0,0,1]')
            k.op(f'v_cvt_pk_bf16_f32 {v(PK + j)}, {v(tp)}, {v(tp + 1)}')

    def share(region):
        for i in range(6):
            k.ds(f'ds_write_b128 v9, {v(PK + 4 * i, 4)} offset:{region + 1024 * i}')
        if not k.hold:
            k.bg_issue(BURST)
        k.barrier()
        for kc in range(24):
            k.ds(f'ds_read_b128 {v(BF + 4 * kc, 4)}, v1 offset:{region + 1024 * kc}', ('b', kc))

    def gemm(seg, hook=None):
        for jt in range(3):
            for kc in range(24):
                idx = seg * 72 + jt * 24 + kc
                k.wait_vm(('w', idx))
                if jt == 0:
                    k.wait_lg(('b', kc))
                c = '0' if kc == 0 else v(ACC + 16 * jt, 16)
                k.op(f'v_mfma_f32_32x32x16_bf16 {v(ACC + 16 * jt, 16)}, {a(4 * (idx % RING), 4)}, '
                     f'{v(BF + 4 * kc, 4)}, {c}')
                if idx + RING < 216:
                    wq(idx + RING)
                if idx + LOOKAHEAD < 216:
                    k.bg_flush_to(('w', idx + LOOKAHEAD))
                if hook and not k.bg and idx + RING >= 216:
                    hook()
                    hook = None

    def pack_acc():
        for j in range(24):
            k.op(f'v_cvt_pk_bf16_f32 {v(PK + j)}, {v(ACC + 2 * j)}, {v(ACC + 2 * j + 1)}')

    def st_write(img, natural):
        for i in range(6):
            if natural:
                for h in range(2):
                    k.ds(f'ds_write_b64 v4, {v(PK + 4 * i + 2 * h, 2)} offset:{img + 32 * i + 16 * h}')
            else:
                k.ds(f'ds_write_b128 v3, {v(PK + 4 * i, 4)} offset:{img + 32 * i}')

    def st_store(img, area, natural, tmp):
        for j in range(6):
            k.ds(f'ds_read_b128 {v(tmp + 4 * j, 4)}, v5 offset:{img + 128 * j}', ('sr', j))
        k.op(f's_mov_b32 s41, {area}')
        for j in range(6):
            k.wait_lg(('sr', j))
            if not natural and j in (2, 4):
                k.op(f's_mov_b32 s41, {area + (j // 2) * 8192}')
            if natural:
                k.vmem(f'buffer_store_dwordx4 {v(tmp + 4 * j, 4)}, {v(GA)}, s[12:15], s41 offen offset:{128 * j} sc1')
            else:
                k.vmem(f'buffer_store_dwordx4 {v(tmp + 4 * j, 4)}, {v(GA + 1 + j % 2)}, s[12:15], s41 offen '
                       f'sc1')

    stamp(k, 0)
    k.wait_vm(('x', 5, 1))
    stamp(k, 1)
    ln_stats(LST1)
    unpack()
    ln_apply(XF)
    k.hold -= 1
    k.bg_issue(12)
    share(LH)
    stamp(k, 2)
    gemm(0)
    stamp(k, 3)
    for i in range(6):
        k.ds(f'ds_read_b128 {v(BF + 4 * i, 4)}, v9 offset:{LH + 1024 * i}', ('o', i))
    pack_acc()
    for i in range(6):
        k.wait_lg(('o', i))
        c = '0' if i == 0 else v(S_, 16)
        k.op(f'v_mfma_f32_32x32x16_bf16 {v(S_, 16)}, {v(BF + 4 * i, 4)}, {v(PK + 4 * i, 4)}, {c}')
    k.op('s_lshl_b32 s19, s16, 12')
    k.op('v_add_u32 v248, s19, v1')
    for q in range(4):
        k.ds(f'ds_write_b128 v248, {v(S_ + 4 * q, 4)} offset:{LSP + 1024 * q}')
    k.bg_issue(BURST)
    k.barrier()
    SR = BF + 24
    for w in range(4):
        for q in range(4):
            k.ds(f'ds_read_b128 {v(SR + 16 * w + 4 * q, 4)}, v1 offset:{LSP + 4096 * w + 1024 * q}', ('sp', w))
    for c in range(3):
        for m in range(2):
            for p in range(2):
                k.ds(f'ds_read_b64_tr_b16 {v(BF + 8 * c + 4 * m + 2 * p, 2)}, v8 '
                     f'offset:{LH + c * 2048 + m * 256 + p * 128}', ('vt', c, m))
    k.bg_issue(WB)
    k.wait_lg(('sp', 3))
    for r in range(0, 16, 2):
        k.op(f'v_pk_add_f32 {v(S_ + r, 2)}, {v(SR + r, 2)}, {v(SR + 16 + r, 2)}')
        k.op(f'v_pk_add_f32 {v(SR + 32 + r, 2)}, {v(SR + 32 + r, 2)}, {v(SR + 48 + r, 2)}')
    for r in range(0, 16, 2):
        k.op(f'v_pk_add_f32 {v(S_ + r, 2)}, {v(S_ + r, 2)}, {v(SR + 32 + r, 2)}')
    for i in range(4):
        k.op(f'v_cndmask_b32 {v(248 + i)}, {v(S_ + i)}, {v(S_ + 4 + i)}, s[22:23]')
    for i in range(4):
        k.op(f'v_cndmask_b32 {v(248 + i)}, {v(248 + i)}, {v(S_ + 8 + i)}, s[24:25]')
    for i in range(4):
        k.op(f'v_cndmask_b32 {v(248 + i)}, {v(248 + i)}, {v(S_ + 12 + i)}, s[26:27]')
    k.op('v_mov_b32 v252, s40')
    k.op('v_cndmask_b32 v251, v251, v252, s[28:29]')
    k.op('v_max3_f32 v252, v248, v249, v250')
    k.op('v_max_f32 v252, v252, v251')
    k.op('v_mov_b32 v253, v252')
    k.op('v_permlane32_swap_b32 v252, v253')
    k.op('v_max_f32 v252, v252, v253')
    for i in range(4):
        k.op(f'v_sub_f32 {v(248 + i)}, {v(248 + i)}, v252')
    for i in range(4):
        k.op(f'v_exp_f32 {v(248 + i)}, {v(248 + i)}')
    k.op('v_add_f32 v252, v248, v249')
    k.op('v_add_f32 v253, v250, v251')
    k.op('v_add_f32 v252, v252, v253')
    xhalf_sum(252, 253)
    k.op('v_rcp_f32 v252, v252')
    for i in range(4):
        k.op(f'v_mul_f32 {v(248 + i)}, {v(248 + i)}, v252')
    k.op('v_cvt_pk_bf16_f32 v252, v248, v249')
    k.op('v_cvt_pk_bf16_f32 v253, v250, v251')
    PF = BF + 88
    for g in range(4):
        for j in range(2):
            k.op(f'v_cndmask_b32 {v(PF + 2 * g + j)}, 0, {v(252 + j)}, s[{20 + 2 * g}:{21 + 2 * g}]')
    for c in range(3):
        for m in range(2):
            k.wait_lg(('vt', c, m))
            cc = '0' if m == 0 else v(ACC + 16 * c, 16)
            k.op(f'v_mfma_f32_32x32x16_bf16 {v(ACC + 16 * c, 16)}, {v(BF + 8 * c + 4 * m, 4)}, '
                 f'{v(PF + 4 * m, 4)}, {cc}')
    pack_acc()
    share(LO_)
    stamp(k, 4)
    gemm(1)
    stamp(k, 5)
    for j in range(0, 48, 2):
        k.op(f'v_pk_add_f32 {v(ACC + j, 2)}, {v(ACC + j, 2)}, {v(XF + j, 2)}')
    pack_acc()
    st_write(STA, True)
    ln_stats(LST2)
    ln_apply(ACC)
    st_write(STB, False)
    share(LH2)
    stamp(k, 6)

    def late_stores():
        st_store(STA, X1, True, XF)
        st_store(STB, H2, False, XF + 24)
    gemm(2, late_stores)
    stamp(k, 7)
    pack_acc()
    st_write(STC, False)
    k.barrier()
    st_store(STC, Q2, False, BF)
    if STAMP:
        k.wait_vm_all()
    stamp(k, 8)
    stamp(k, 15, real=True)
    k.label('K1_END')
    k.op('s_endpgm')
    gen_fold(k)
    return k.text(), descriptor('temporal_kernel', 256 + 4 * RING, 256, 80)


K2_LDS = 163840


def gen_k2():
    k = K()
    header(k, 'spatial_kernel')
    k.op('s_cmp_ge_u32 s2, 184')
    k.op('s_cbranch_scc1 K2_END')
    k.op('s_and_b32 s17, s2, 7')
    k.op('s_cmp_eq_u32 s17, 7')
    k.op('s_cbranch_scc1 K2_END')
    k.op('s_lshr_b32 s18, s2, 3')
    k.op('s_load_dwordx2 s[4:5], s[0:1], 40')
    k.op('s_load_dwordx2 s[6:7], s[0:1], 56')
    k.op('v_lshrrev_b32 v1, 6, v0')
    k.op('v_readfirstlane_b32 s16, v1')
    stamp_init(k, 182)
    stamp(k, 14, 14, 15, real=True)
    stamp(k, 12, 14, 15)
    k.op('v_and_b32 v8, 63, v0')
    k.op('v_lshlrev_b32 v1, 4, v8')
    k.op('v_and_b32 v9, 31, v8')
    k.op('v_lshrrev_b32 v10, 5, v8')
    k.op('s_mul_i32 s19, s16, 40960')
    k.op(f's_mul_i32 s20, s17, {FRAME}')
    k.op(f's_mul_i32 s21, s18, {TILE}')
    k.op('s_add_u32 s21, s21, s20')
    k.op(f's_mul_i32 s22, s16, {TILE}')
    k.op('s_add_u32 s22, s22, s20')
    k.op(f's_add_u32 s22, s22, {H2}')
    k.op('s_mul_i32 s28, s16, 73728')
    k.op('s_waitcnt lgkmcnt(0)')
    srd(k, 8, 4, XBYTES)
    srd(k, 12, 6, WS_BYTES)
    MREF, L_ = 6, 7
    S_, P_, O_ = 16, 32, 40
    KAD, VAD = 232, 240
    QA, KA, VA = 0, 96, 128
    KR, VR = 8, 8

    def blk_off(it, blk):
        return (it % 2) * 16384 + blk * 8192 if blk < 2 else 32768

    def dma1(it, blk, q):
        if q % 4 == 0:
            k.op(f's_add_u32 m0, s19, {blk_off(it, blk) + q * 1024}')
            k.op(f's_add_u32 s27, s22, {it * 4 * TILE + blk * 8192 + q * 1024}')
        k.vmem(f'buffer_load_dwordx4 v1, s[12:15], s27 offen offset:{(q % 4) * 1024} lds', ('kv', it, 0 if blk < 2 else 1))

    def dma(it, blks):
        for blk in blks:
            for q in range(8):
                k.bg.append((('kv', it, 0 if blk < 2 else 1), (lambda a_=blk, b_=q: dma1(it, a_, b_))))

    def wslot(idx):
        return 160 + 4 * idx if idx < 24 else (4 * (idx - 24) if idx < 64 else 160 + 4 * (idx - 64))

    def wload(idx):
        k.op(f's_add_u32 s29, s28, {W4 + idx * 1024}')
        k.vmem(f'buffer_load_dwordx4 {a(wslot(idx), 4)}, v1, s[12:15], s29 offen', ('w', idx))

    def wq(idx):
        k.bg.append((('w', idx), lambda: wload(idx)))

    k.op(f's_add_u32 s23, s21, {Q2}')
    k.op('s_mul_i32 s30, s16, 6144')
    for i in range(6):
        k.op(f's_add_u32 s31, s30, {i * 1024}')
        k.op('s_cmp_ge_u32 s31, 16384')
        k.op('s_cselect_b32 s35, 24576, 0')
        k.op('s_add_u32 s35, s35, 16384')
        k.op('s_add_u32 m0, s31, s35')
        k.op('s_add_u32 s32, s31, s23')
        k.vmem('buffer_load_dwordx4 v1, s[12:15], s32 offen lds', 'q')
    dma(0, [0])
    k.bg_flush()
    dma(0, [1, 2])
    k.bg_period = 40
    k.op('v_and_b32 v11, 3, v9')
    k.op('v_lshlrev_b32 v11, 2, v11')
    k.op('v_bfe_u32 v12, v9, 2, 2')
    k.op('v_or_b32 v11, v11, v12')
    k.op('v_xor_b32 v11, v11, v10')
    k.op('v_lshlrev_b32 v12, 8, v9')
    for e in range(8):
        k.op(f'v_xor_b32 v13, {2 * e}, v11')
        k.op(f'v_lshl_add_u32 {v(KAD + e)}, v13, 4, v12')
    k.op('v_and_b32 v11, 15, v8')
    k.op('v_lshrrev_b32 v12, 2, v11')
    k.op('v_lshl_add_u32 v13, v10, 2, v12')
    k.op('v_lshlrev_b32 v13, 8, v13')
    k.op('v_add_u32 v13, s19, v13')
    k.op('v_bfe_u32 v14, v11, 1, 1')
    k.op('v_lshl_add_u32 v13, v14, 3, v13')
    k.op('v_bfe_u32 v14, v8, 4, 1')
    k.op('v_and_b32 v15, 1, v11')
    k.op('v_lshl_add_u32 v14, v14, 1, v15')
    k.op('v_lshl_add_u32 v12, v12, 2, v10')
    k.op('v_xor_b32 v14, v14, v12')
    for c4 in range(4):
        k.op(f's_add_u32 s26, s16, {c4}')
        k.op('s_and_b32 s26, s26, 3')
        k.op('s_lshl_b32 s26, s26, 2')
        for p in range(2):
            k.op(f'v_xor_b32 v15, {2 * p}, v14')
            k.op('v_xor_b32 v15, s26, v15')
            k.op(f'v_lshl_add_u32 {v(VAD + 2 * c4 + p)}, v15, 4, v13')
            if p:
                k.op(f'v_add_u32 {v(VAD + 2 * c4 + p)}, 2048, {v(VAD + 2 * c4 + p)}')
    k.op(f's_mov_b32 s24, {f32hex(24.0)}')
    k.op('s_mov_b32 s25, 0xff800000')
    k.op(f'v_mov_b32 {v(L_)}, 0')
    stamp(k, 0, 14, 15)
    k.bg_issue(4)
    k.wait_vm('q')
    k.op('s_barrier')
    for kc in range(24):
        blk = kc // 8
        off = 16384 + blk * 8192 if blk < 2 else 57344
        k.ds(f'ds_read_b128 {a(QA + 4 * kc, 4)}, {v(KAD + kc % 8)} offset:{off}', ('qf', kc))
    for e in range(8):
        k.op(f'v_add_u32 {v(KAD + e)}, s19, {v(KAD + e)}')
    k.bg_flush()
    k.barrier()

    ct_order = [8, 9, 10, 11, 0, 1, 2, 3, 4, 5, 6, 7]
    wnext = 0
    for it in range(6):
        if it == 5:
            k.bg_flush()
            k.op('s_cmp_eq_u32 s16, 3')
            k.op('s_cbranch_scc1 K2_LOOPDONE')
        stamp(k, 1 + it, 14, 15)
        k.bg_period = 60
        if it < 5:
            dma(it + 1, [0, 1])
            if it >= 1:
                for _ in range(6):
                    wq(wnext); wnext += 1

        def kread(kc, it=it):
            k.ds(f'ds_read_b128 {a(KA + 4 * (kc % KR), 4)}, {v(KAD + kc % 8)} offset:{blk_off(it, kc // 8)}', ('k', kc))
        if it == 0 or it == 5:
            k.wait_vm(('kv', it, 0))
            for kc in range(KR - 2):
                kread(kc)
        for kc in range(24):
            nk = kc + KR - 2
            if nk < 24:
                if nk == 16:
                    k.wait_vm(('kv', it, 1))
                kread(nk)
            if kc % 2 == 0:
                k.wait_lg(('k', kc + 1))
            c = '0' if kc == 0 else v(S_, 16)
            k.op(f'v_mfma_f32_32x32x16_bf16 {v(S_, 16)}, {a(KA + 4 * (kc % KR), 4)}, {a(QA + 4 * kc, 4)}, {c}')
        vlist = [(m, ct) for m in range(2) for ct in ct_order]

        def vread(j):
            m, ct = vlist[j]
            for p in range(2):
                k.ds(f'ds_read_b64_tr_b16 {a(VA + 4 * (j % VR) + 2 * p, 2)}, {v(VAD + 2 * (ct % 4) + p)} '
                     f'offset:{blk_off(it, ct // 4) + m * 4096}', ('v', j))
        for j in range(VR - 2):
            vread(j)
        if it == 5:
            with k.nobg():
                k.op('s_cmp_lg_u32 s16, 2')
                k.op('s_cbranch_scc1 K2_NOMASK')
                snap = k.snapshot()
                for r in (13, 14, 15):
                    k.op(f'v_mov_b32 {v(S_ + r)}, s25')
                k.op('s_mov_b32 exec_lo, 0')
                k.op(f'v_mov_b32 {v(S_ + 12)}, s25')
                k.op('s_mov_b32 exec_lo, -1')
                k.nop(4)
                k.label('K2_NOMASK')
                k.restore(snap)
        k.op(f'v_max3_f32 v11, {v(S_)}, {v(S_ + 1)}, {v(S_ + 2)}')
        k.op(f'v_max3_f32 v12, {v(S_ + 3)}, {v(S_ + 4)}, {v(S_ + 5)}')
        k.op(f'v_max3_f32 v11, v11, {v(S_ + 6)}, {v(S_ + 7)}')
        k.op(f'v_max3_f32 v12, v12, {v(S_ + 8)}, {v(S_ + 9)}')
        k.op(f'v_max3_f32 v11, v11, {v(S_ + 10)}, {v(S_ + 11)}')
        k.op(f'v_max3_f32 v12, v12, {v(S_ + 12)}, {v(S_ + 13)}')
        k.op(f'v_max3_f32 v11, v11, {v(S_ + 14)}, {v(S_ + 15)}')
        k.op('v_max_f32 v11, v11, v12')
        k.op('v_mov_b32 v12, v11')
        k.op('v_permlane32_swap_b32 v11, v12')
        k.op('v_max_f32 v11, v11, v12')
        if it == 0:
            k.op(f'v_mov_b32 {v(MREF)}, v11')
        else:
            lab = k.newlabel('K2_NORESC')
            with k.nobg():
                k.op(f'v_sub_f32 v12, v11, {v(MREF)}')
                k.op('v_cmp_lt_f32 vcc, s24, v12')
                k.nop(2)
                k.op(f's_cbranch_vccz {lab}')
                snap = k.snapshot()
                clk0 = k.clk
                k.op(f'v_max_f32 v11, v11, {v(MREF)}')
                k.op(f'v_sub_f32 v12, {v(MREF)}, v11')
                k.op('v_exp_f32 v12, v12')
                k.op(f'v_mov_b32 {v(MREF)}, v11')
                k.op(f'v_mul_f32 {v(L_)}, {v(L_)}, v12')
                for r in range(192):
                    k.op(f'v_mul_f32 {v(O_ + r)}, {v(O_ + r)}, v12')
                k.nop(4)
                k.label(lab)
                k.restore(snap)
                k.clk = clk0
        for r in range(0, 8):
            k.op(f'v_sub_f32 {v(S_ + r)}, {v(S_ + r)}, {v(MREF)}')
        for r in range(0, 8):
            k.op(f'v_exp_f32 {v(S_ + r)}, {v(S_ + r)}')
        for r in range(0, 8, 2):
            k.op(f'v_cvt_pk_bf16_f32 {v(P_ + r // 2)}, {v(S_ + r)}, {v(S_ + r + 1)}')
        filler = []
        for r in range(8, 16):
            filler.append(f'v_sub_f32 {v(S_ + r)}, {v(S_ + r)}, {v(MREF)}')
        for r in range(8, 16):
            filler.append(f'v_exp_f32 {v(S_ + r)}, {v(S_ + r)}')
        for r in range(8, 16, 2):
            filler.append(f'v_cvt_pk_bf16_f32 {v(P_ + r // 2)}, {v(S_ + r)}, {v(S_ + r + 1)}')
        filler.append(f'v_add_f32 v11, {v(S_)}, {v(S_ + 1)}')
        filler.append(f'v_add_f32 v12, {v(S_ + 2)}, {v(S_ + 3)}')
        for r in range(4, 16, 2):
            filler.append(f'v_add_f32 v11, v11, {v(S_ + r)}')
            filler.append(f'v_add_f32 v12, v12, {v(S_ + r + 1)}')
        filler.append('v_add_f32 v11, v11, v12')
        filler.append(f'v_add_f32 {v(L_)}, {v(L_)}, v11')
        for j in range(24):
            m, ct = vlist[j]
            nj = j + VR - 2
            if nj < 24:
                vread(nj)
            if m == 1:
                while len(filler) > 16:
                    k.op(filler.pop(0))
            if j % 2 == 0:
                k.wait_lg(('v', j + 1))
            c = '0' if (it == 0 and m == 0) else v(O_ + 16 * ct, 16)
            k.op(f'v_mfma_f32_32x32x16_bf16 {v(O_ + 16 * ct, 16)}, {a(VA + 4 * (j % VR), 4)}, '
                 f'{v(P_ + 4 * m, 4)}, {c}')
            for _ in range(4):
                if filler:
                    k.op(filler.pop(0))
            if j == 15 and it < 5:
                k.bg_flush()
                k.bg_period = 30
                dma(it + 1, [2])
            if j == 20 and it < 4:
                k.wait_vm(('kv', it + 1, 0))
                for kc in range(KR - 2):
                    kread(kc, it + 1)
        while filler:
            k.op(filler.pop(0))
    k.bg_flush()
    k.nop(12)
    k.label('K2_LOOPDONE')
    k.nop(12)
    k.wait_vm_all()
    k.wait_lg_all()
    stamp(k, 7, 14, 15)
    k.bg_period = 60
    k.op('v_lshrrev_b32 v11, 3, v8')
    k.op('s_lshl_b32 s26, s16, 3')
    k.op('v_add_u32 v11, s26, v11')
    k.op('v_and_b32 v12, 7, v8')
    k.op('v_mul_u32_u24 v5, 784, v11')
    k.op('v_lshl_add_u32 v5, v12, 4, v5')
    k.op('v_mul_u32_u24 v13, 768, v11')
    k.op('v_lshl_add_u32 v13, v12, 4, v13')
    k.op(f's_add_u32 s26, s21, {X1}')
    XR = 232
    for j in range(6):
        k.vmem(f'buffer_load_dwordx4 {v(XR + 4 * j, 4)}, v13, s[12:15], s26 offen offset:{128 * j}', ('x1', j))
    with k.nobg():
        k.op('s_lshl_b32 s26, s18, 5')
        k.op('v_add_u32 v11, s26, v11')
        k.op('s_movk_i32 s27, 729')
        k.op('v_cmp_gt_u32 vcc, s27, v11')
        k.op('s_mul_i32 s27, s17, 729')
        k.op('s_add_u32 s27, s27, s26')
        k.op('s_mul_i32 s27, s27, 768')
        k.op('v_add_u32 v13, s27, v13')
        k.op(f'v_mov_b32 v12, {BIG}')
        k.op('v_cndmask_b32 v15, v12, v13, vcc')
    for idx in range(wnext, 64):
        wq(idx)
    k.op(f'v_mov_b32 v12, {v(L_)}')
    k.op(f'v_permlane32_swap_b32 {v(L_)}, v12')
    k.op(f'v_add_f32 {v(L_)}, {v(L_)}, v12')
    k.op('v_lshlrev_b32 v11, 3, v9')
    k.op('v_add_u32 v12, s19, v11')
    k.ds(f'ds_write_b64 v12, {v(MREF, 2)} offset:36864')
    k.op('v_add_u32 v13, s19, v1')
    for e in range(1, 4):
        for b in range(3):
            for q in range(4):
                k.ds(f'ds_write_b128 v13, {v(O_ + 16 * (4 * b + e) + 4 * q, 4)} '
                     f'offset:{(e - 1) * 12288 + b * 4096 + q * 1024}')
    for e in range(1, 4):
        k.op(f's_sub_u32 s26, s16, {e}')
        k.op('s_and_b32 s26, s26, 3')
        k.op('s_mul_i32 s26, s26, 40960')
        k.op(f'v_add_u32 v{1 + e}, s26, v1')
        k.op(f'v_add_u32 {v(P_ + e)}, s26, v11')
    k.bg_issue(8)
    k.barrier()
    k.op(f'v_mov_b32 {v(S_)}, {v(MREF)}')
    k.op(f'v_mov_b32 {v(S_ + 1)}, {v(L_)}')
    for e in range(1, 4):
        k.ds(f'ds_read_b64 {v(S_ + 2 * e, 2)}, {v(P_ + e)} offset:36864', 'st')
    PKR = 16
    for e in range(1, 4):
        for b in range(3):
            for q in range(4):
                k.ds(f'ds_read_b128 {v(O_ + 16 * (4 * b + e) + 4 * q, 4)}, v{1 + e} '
                     f'offset:{(e - 1) * 12288 + b * 4096 + q * 1024}', ('p', e))
    k.wait_lg('st')
    k.op(f'v_max3_f32 v12, {v(S_)}, {v(S_ + 2)}, {v(S_ + 4)}')
    k.op(f'v_max_f32 v12, v12, {v(S_ + 6)}')
    for w in range(4):
        k.op(f'v_sub_f32 {v(S_ + 2 * w)}, {v(S_ + 2 * w)}, v12')
    for w in range(4):
        k.op(f'v_exp_f32 {v(S_ + 2 * w)}, {v(S_ + 2 * w)}')
    k.op(f'v_mul_f32 v13, {v(S_)}, {v(S_ + 1)}')
    for w in range(1, 4):
        k.op(f'v_fmac_f32 v13, {v(S_ + 2 * w)}, {v(S_ + 2 * w + 1)}')
    k.op('v_rcp_f32 v13, v13')
    for w in range(4):
        k.op(f'v_mul_f32 {v(S_ + 2 * w)}, {v(S_ + 2 * w)}, v13')
    for b in range(3):
        for r in range(0, 16, 2):
            o = O_ + 64 * b + r
            k.op(f'v_pk_mul_f32 {v(o, 2)}, {v(o, 2)}, {v(S_, 2)} op_sel_hi:[1,0]')
    for e in range(1, 4):
        k.wait_lg(('p', e))
        for b in range(3):
            for r in range(0, 16, 2):
                o = O_ + 64 * b + r
                k.op(f'v_pk_fma_f32 {v(o, 2)}, {v(o + 16 * e, 2)}, {v(S_ + 2 * e, 2)}, {v(o, 2)} op_sel_hi:[1,0,1]')
    for b in range(3):
        for j in range(8):
            o = O_ + 64 * b + 2 * j
            k.op(f'v_cvt_pk_bf16_f32 {v(PKR + 8 * b + j)}, {v(o)}, {v(o + 1)}')
    for b in range(3):
        for h in range(2):
            k.ds(f'ds_write_b128 v4, {v(PKR + 8 * b + 4 * h, 4)} offset:{24576 + 2048 * b + 1024 * h}')
    for x in range(1, 4):
        k.op(f'v_add_u32 v{1 + x}, {40960 * x}, v1')
    k.bg_flush()
    k.barrier()
    BF = 40
    stamp(k, 8, 13, 14)
    for kc in range(24):
        own = (kc % 8) // 2
        x = (own + 1) % 4
        k.ds(f'ds_read_b128 {v(BF + 4 * kc, 4)}, v{1 + x} offset:{24576 + 2048 * (kc // 8) + 1024 * (kc % 2)}', ('b', kc))
    k.op('v_mul_u32_u24 v11, 784, v9')
    k.op('s_mul_i32 s27, s16, 192')
    k.op('v_add_u32 v11, s27, v11')
    k.op('v_lshl_add_u32 v11, v10, 3, v11')
    ACC = 136
    for jt in range(3):
        for kc in range(24):
            idx = jt * 24 + kc
            k.wait_vm(('w', idx))
            if jt == 0:
                k.wait_lg(('b', kc))
            c = '0' if kc == 0 else v(ACC + 16 * jt, 16)
            k.op(f'v_mfma_f32_32x32x16_bf16 {v(ACC + 16 * jt, 16)}, {a(wslot(idx), 4)}, {v(BF + 4 * kc, 4)}, {c}')
            if idx < 8:
                wload(idx + 64)
    stamp(k, 9, 13, 14)
    for j in range(24):
        k.op(f'v_cvt_pk_bf16_f32 {v(PKR + j)}, {v(ACC + 2 * j)}, {v(ACC + 2 * j + 1)}')
        if j % 2:
            i, h = j // 4, (j // 2) % 2
            k.ds(f'ds_write_b64 v11, {v(PKR + 4 * i + 2 * h, 2)} offset:{32 * i + 16 * h}')
    k.barrier()
    DR = 40
    for j in range(6):
        k.ds(f'ds_read_b128 {v(DR + 4 * j, 4)}, v5 offset:{128 * j}', ('d', j))
    k.op('s_mov_b32 s27, 0xffff0000')
    k.wait_vm(('x1', 5))
    for j in range(6):
        k.wait_lg(('d', j))
        for q in range(4):
            r = 4 * j + q
            t0 = 64 + 4 * (q % 2)
            k.op(f'v_lshlrev_b32 {v(t0)}, 16, {v(XR + r)}')
            k.op(f'v_and_b32 {v(t0 + 1)}, s27, {v(XR + r)}')
            k.op(f'v_lshlrev_b32 {v(t0 + 2)}, 16, {v(DR + r)}')
            k.op(f'v_and_b32 {v(t0 + 3)}, s27, {v(DR + r)}')
            k.op(f'v_pk_add_f32 {v(t0, 2)}, {v(t0, 2)}, {v(t0 + 2, 2)}')
            k.op(f'v_cvt_pk_bf16_f32 {v(DR + r)}, {v(t0)}, {v(t0 + 1)}')
        k.vmem(f'buffer_store_dwordx4 {v(DR + 4 * j, 4)}, v15, s[8:11], 0 offen offset:{128 * j} sc1')
    if STAMP:
        k.wait_vm_all()
    stamp(k, 10, 13, 14)
    stamp(k, 15, 13, 14, real=True)
    k.label('K2_END')
    k.op('s_endpgm')
    return k.text(), descriptor('spatial_kernel', 512, 256, 80)


def main():
    out = []
    out.append(f'; @launch kernel=temporal_kernel grid=({183 + NFOLD},1,1) block=(256,1,1) lds={K1_LDS}')
    out.append(f'; @launch kernel=spatial_kernel grid=(184,1,1) block=(256,1,1) lds={K2_LDS}')
    out.append('.amdgcn_target "amdgcn-amd-amdhsa--gfx950"')
    out.append('.text')
    descs = []
    for g in (gen_k1, gen_k2):
        t, d = g()
        out.append(t)
        descs.append(d)
    out.append('.section .rodata,"a"')
    for d in descs:
        out.append('.p2align 6')
        out.append(d)
    open(sys.argv[1], 'w').write('\n'.join(out) + '\n')


if __name__ == '__main__':
    main()
```

```python
import sys, os, struct
sys.path.insert(0, os.path.dirname(__file__))
from asmlib import K, v, a, s

T, N, C = 7, 729, 384
W1, W2, W3, W4 = 0, 0x48000, 0x90000, 0xD8000
H2, Q2, X1 = 0x200000, 0x600000, 0xA00000
H1 = 0xE00000
TILE = 24576
FRAME = 23 * TILE
XBYTES = T * N * C * 2
WS_BYTES = 0x10000000
BIG = 0x7F000000
SCALE_LOG2E = (C ** -0.5) * 1.4426950408889634
STAMP = os.environ.get('STAMP', '0') == '1'


def f32hex(x):
    return '0x%08x' % struct.unpack('<I', struct.pack('<f', x))[0]


def srd(k, base, ptr, nbytes):
    k.op(f's_mov_b32 s{base}, s{ptr}')
    k.op(f's_and_b32 s{base + 1}, s{ptr + 1}, 0xffff')
    k.op(f's_mov_b32 s{base + 2}, {nbytes}')
    k.op(f's_mov_b32 s{base + 3}, 0x00020000')


def stamp_init(k, lastwg=182):
    if not STAMP:
        return
    with k.nobg():
        k.op('s_load_dwordx2 s[60:61], s[0:1], 48')
        k.op('s_waitcnt lgkmcnt(0)')
        k.lg = []
        srd(k, 64, 60, 256)
        k.op('s_mov_b32 s70, 0x1000')
        k.op('s_or_b32 s69, s2, s16')
        k.op('s_cmp_eq_u32 s69, 0')
        k.op('s_cselect_b32 s70, 0, s70')
        k.op(f's_xor_b32 s69, s2, {lastwg}')
        k.op('s_or_b32 s69, s69, s16')
        k.op('s_cmp_eq_u32 s69, 0')
        k.op('s_cselect_b32 s70, 128, s70')


def stamp(k, idx, r0=254, r1=255, real=False):
    if not STAMP:
        return
    with k.nobg():
        k.op('s_waitcnt lgkmcnt(0)')
        k.lg = []
        k.op('s_memrealtime s[62:63]' if real else 's_memtime s[62:63]')
        k.op('s_waitcnt lgkmcnt(0)')
        k.op(f's_add_u32 s69, s70, {4 * idx}')
        k.op(f'v_mov_b32 v{r1}, s62')
        k.op(f'v_mov_b32 v{r0}, s69')
        k.vmem(f'buffer_store_dword v{r1}, v{r0}, s[64:67], 0 offen')


def header(k, name):
    k.raw(f'.globl {name}')
    k.raw('.p2align 8')
    k.raw(f'.type {name},@function')
    k.raw(f'{name}:')


def descriptor(name, nvgpr, accum, nsgpr):
    return f'''.amdhsa_kernel {name}
  .amdhsa_next_free_vgpr {nvgpr}
  .amdhsa_next_free_sgpr {nsgpr}
  .amdhsa_accum_offset {accum}
  .amdhsa_group_segment_fixed_size 0
  .amdhsa_kernarg_size 64
  .amdhsa_user_sgpr_count 2
  .amdhsa_user_sgpr_kernarg_segment_ptr 1
  .amdhsa_system_sgpr_workgroup_id_x 1
  .amdhsa_float_denorm_mode_32 3
.end_amdhsa_kernel'''


K0_LDS = 98304


NFOLD = 72
FLAG = 240
READY = 112


def gen_fold(k):
    k.label('K0_FOLD')
    k.op('s_load_dwordx4 s[4:7], s[0:1], 8')
    k.op('s_load_dwordx4 s[8:11], s[0:1], 24')
    k.op('s_load_dwordx4 s[48:51], s[0:1], 48')
    k.op('v_lshrrev_b32 v1, 6, v0')
    k.op('v_readfirstlane_b32 s16, v1')
    if STAMP:
        stamp_init(k, 100000)
        k.op('s_cmp_eq_u32 s70, 0')
        k.op('s_cselect_b32 s70, 64, s70')
        k.op('s_mov_b32 s71, 0')
        stamp(k, 14, 30, 31, real=True)
        stamp(k, 12, 30, 31)
    k.op('v_and_b32 v1, 63, v0')
    k.op('s_cmp_ge_u32 s2, 36')
    k.op('s_cselect_b32 s14, 1, 0')
    k.op('s_mul_i32 s15, s14, 36')
    k.op('s_sub_u32 s15, s2, s15')
    k.op('s_mul_hi_u32 s17, s15, 0x2AAAAAAB')
    k.op('s_mul_i32 s18, s17, 6')
    k.op('s_sub_u32 s18, s15, s18')
    k.op('s_mov_b32 s19, s14')
    k.op('s_mul_i32 s36, s16, 768')
    k.op('s_lshl_b32 s37, s17, 6')
    k.op('s_mul_i32 s37, s37, 2304')
    k.op('s_mul_i32 s38, s19, 1536')
    k.op('s_add_u32 s37, s37, s38')
    k.op('s_lshl_b32 s38, s18, 6')
    k.op('s_mul_i32 s38, s38, 2304')
    k.op('s_add_u32 s38, s38, 768')
    k.op('s_mov_b32 s39, 0x05555556')
    k.op('s_movk_i32 s40, 2304')
    k.op('s_mul_i32 s41, s16, 12288')
    for u in range(12):
        k.op(f'v_add_u32 v2, s36, v1')
        if u:
            k.op(f'v_add_u32 v2, {64 * u}, v2')
        k.op('v_mul_hi_u32 v3, v2, s39')
        k.op('v_mul_u32_u24 v4, 48, v3')
        k.op('v_sub_u32 v4, v2, v4')
        k.op('v_xor_b32 v5, v4, v3')
        k.op('v_and_b32 v5, 15, v5')
        k.op('v_and_b32 v4, 48, v4')
        k.op('v_or_b32 v4, v4, v5')
        k.op('v_mul_lo_u32 v3, v3, s40')
        k.op(f'v_lshl_add_u32 {v(16 + u)}, v4, 4, v3')
    k.op('v_lshrrev_b32 v28, 3, v1')
    k.op('v_mul_u32_u24 v28, 768, v28')
    k.op('v_and_b32 v3, 7, v1')
    k.op('v_lshl_add_u32 v28, v3, 4, v28')
    k.op('s_lshl_b32 s43, s18, 7')
    k.op('s_mul_i32 s44, s16, 73728')
    k.op('s_add_u32 s43, s43, s44')
    k.op('s_lshr_b32 s45, s16, 1')
    k.op('s_and_b32 s46, s16, 1')
    k.op('v_and_b32 v2, 31, v1')
    k.op('v_lshrrev_b32 v3, 5, v1')
    k.op('s_lshl_b32 s47, s45, 5')
    k.op('v_add_u32 v4, s47, v2')
    k.op('v_xor_b32 v5, v3, v4')
    k.op('v_and_b32 v5, 15, v5')
    k.op('v_mul_u32_u24 v4, 768, v4')
    for e in range(8):
        k.op(f'v_xor_b32 v6, {2 * e}, v5')
        k.op(f'v_lshl_add_u32 {v(32 + e)}, v6, 4, v4')
    k.op('s_lshl_b32 s47, s46, 5')
    k.op('v_add_u32 v4, s47, v2')
    k.op('v_xor_b32 v5, v3, v4')
    k.op('v_and_b32 v5, 15, v5')
    k.op('v_mul_u32_u24 v4, 768, v4')
    k.op('v_add_u32 v4, 49152, v4')
    for e in range(8):
        k.op(f'v_xor_b32 v6, {2 * e}, v5')
        k.op(f'v_lshl_add_u32 {v(40 + e)}, v6, 4, v4')
    k.op('v_and_b32 v6, 15, v1')
    k.op('v_lshrrev_b32 v7, 2, v6')
    k.op('v_lshl_add_u32 v7, v3, 3, v7')
    k.op('v_lshlrev_b32 v7, 7, v7')
    k.op('v_and_b32 v8, 3, v6')
    k.op('v_lshl_add_u32 v7, v8, 3, v7')
    k.op('v_bfe_u32 v8, v1, 4, 1')
    k.op('v_lshl_add_u32 v7, v8, 5, v7')
    k.op('s_lshl_b32 s47, s46, 6')
    k.op('s_add_u32 s47, s47, 49152')
    k.op('v_add_u32 v7, s47, v7')
    k.op('v_lshlrev_b32 v29, 4, v1')
    k.op('s_lshl_b32 s52, s18, 1')
    k.op('s_add_u32 s52, s52, s46')
    k.op('s_mul_i32 s52, s52, 24')
    k.op('s_lshl_b32 s53, s17, 1')
    k.op('s_add_u32 s53, s53, s45')
    k.op('s_lshl_b32 s53, s53, 1')
    k.op('s_add_u32 s52, s52, s53')
    k.op('s_lshl_b32 s52, s52, 10')
    k.op('s_waitcnt lgkmcnt(0)')
    srd(k, 32, 50, WS_BYTES)
    srd(k, 56, 48, 256)
    k.op('s_mov_b32 s20, s4')
    k.op('s_mov_b32 s21, s5')
    k.op('s_mov_b32 s22, s6')
    k.op('s_mov_b32 s23, s7')
    k.label('K0_PASS')
    if STAMP:
        k.op('s_add_u32 s70, s70, s71')
        stamp(k, 0, 30, 31)
    srd(k, 24, 20, C * 3 * C * 2)
    srd(k, 28, 22, C * C * 2)
    for u in range(12):
        k.op(f's_add_u32 m0, s41, {u * 1024}')
        k.op(f'buffer_load_dwordx4 {v(16 + u)}, s[24:27], s37 offen lds')
    k.op('s_cmp_eq_u32 s19, 1')
    k.op('s_cbranch_scc1 K0_VO')
    for u in range(12):
        k.op(f's_add_u32 m0, s41, {49152 + u * 1024}')
        k.op(f'buffer_load_dwordx4 {v(16 + u)}, s[24:27], s38 offen lds')
    k.op('s_branch K0_ST')
    k.label('K0_VO')
    for u in range(12):
        k.op(f's_add_u32 m0, s41, {49152 + u * 1024}')
        k.op(f's_add_u32 s44, s43, {u * 6144}')
        k.op('buffer_load_dwordx4 v28, s[28:31], s44 offen lds')
    k.label('K0_ST')
    stamp(k, 1, 30, 31)
    k.op('s_waitcnt vmcnt(0)')
    stamp(k, 2, 30, 31)
    k.op('s_barrier')
    AF, BF, D = 48, 144, 240
    for cc in range(24):
        k.op(f'ds_read_b128 {v(AF + 4 * cc, 4)}, {v(32 + cc % 8)} offset:{(cc // 8) * 256}')
    k.op('s_cmp_eq_u32 s19, 1')
    k.op('s_cbranch_scc1 K0_VO2')
    for cc in range(24):
        k.op(f'ds_read_b128 {v(BF + 4 * cc, 4)}, {v(40 + cc % 8)} offset:{(cc // 8) * 256}')
    k.op(f's_mov_b32 s40, {f32hex(SCALE_LOG2E)}')
    k.op('s_branch K0_MM')
    k.label('K0_VO2')
    for cc in range(24):
        for p in range(2):
            k.op(f'ds_read_b64_tr_b16 {v(BF + 4 * cc + 2 * p, 2)}, v7 offset:{cc * 2048 + p * 512}')
    k.op('s_mov_b32 s40, 1.0')
    k.label('K0_MM')
    k.op('s_waitcnt lgkmcnt(0)')
    for cc in range(24):
        c = '0' if cc == 0 else v(D, 16)
        k.op(f'v_mfma_f32_32x32x16_bf16 {v(D, 16)}, {v(AF + 4 * cc, 4)}, {v(BF + 4 * cc, 4)}, {c}')
    for r in range(16):
        k.op(f'v_mul_f32 {v(D + r)}, s40, {v(D + r)}')
    for r in range(8):
        k.op(f'v_cvt_pk_bf16_f32 {v(8 + r)}, {v(D + 2 * r)}, {v(D + 2 * r + 1)}')
    k.op(f's_mul_i32 s36, s14, {W2}')
    k.op('s_add_u32 s36, s36, s52')
    k.op('buffer_store_dwordx4 v[8:11], v29, s[32:35], s36 offen sc1')
    k.op('buffer_store_dwordx4 v[12:15], v29, s[32:35], s36 offen offset:1024 sc1')
    stamp(k, 3, 30, 31)
    k.op('s_waitcnt vmcnt(0)')
    stamp(k, 4, 30, 31)
    k.op('s_barrier')
    if STAMP:
        k.op('s_mov_b32 s71, 20')
    k.op('s_cmp_lg_u32 s16, 0')
    k.op('s_cbranch_scc1 K0_NOPUB')
    k.op('s_lshl_b32 s36, s14, 2')
    k.op(f's_add_u32 s36, s36, {FLAG}')
    k.op('v_mov_b32 v2, 1')
    k.op('v_mov_b32 v3, 0')
    k.op('s_mov_b64 exec, 1')
    k.op('buffer_atomic_add v2, v3, s[56:59], s36 offen sc0 sc1')
    k.op('s_waitcnt vmcnt(0)')
    k.op('v_readfirstlane_b32 s47, v2')
    k.op('s_cmp_lg_u32 s47, 35')
    k.op('s_cbranch_scc1 K0_NOTLAST')
    k.op(f's_sub_u32 s36, s36, {FLAG - READY}')
    k.op('v_mov_b32 v2, 36')
    k.op('buffer_store_dword v2, v3, s[56:59], s36 offen sc1')
    k.label('K0_NOTLAST')
    k.op('s_mov_b64 exec, -1')
    k.label('K0_NOPUB')
    k.op('s_cmp_ge_u32 s14, 2')
    k.op('s_cbranch_scc1 K0_ZERO')
    k.op('s_add_u32 s14, s14, 2')
    k.op('s_mov_b32 s20, s8')
    k.op('s_mov_b32 s21, s9')
    k.op('s_mov_b32 s22, s10')
    k.op('s_mov_b32 s23, s11')
    k.nop(16)
    k.op('s_branch K0_PASS')
    k.label('K0_ZERO')
    k.op('s_cmp_ge_u32 s2, 21')
    k.op('s_cbranch_scc1 K1_END')
    k.op('s_mul_hi_u32 s36, s2, 0x55555556')
    k.op('s_mul_i32 s37, s36, 3')
    k.op('s_sub_u32 s37, s2, s37')
    k.op('s_lshl_b32 s37, s37, 13')
    k.op(f's_mul_i32 s38, s36, {FRAME}')
    k.op('s_add_u32 s38, s38, s37')
    k.op(f's_add_u32 s38, s38, {H2 + 22 * TILE + 25 * 256}')
    k.op('v_lshlrev_b32 v2, 4, v0')
    k.op('s_movk_i32 s39, 1792')
    k.op('v_cmp_gt_u32 vcc, s39, v2')
    k.op(f'v_mov_b32 v3, {BIG}')
    k.op('v_cndmask_b32 v2, v3, v2, vcc')
    k.op('v_mov_b32 v4, 0')
    k.op('v_mov_b32 v5, 0')
    k.op('v_mov_b32 v6, 0')
    k.op('v_mov_b32 v7, 0')
    k.op('buffer_store_dwordx4 v[4:7], v2, s[32:35], s38 offen sc1')
    k.op('s_endpgm')


LH, LO_, LH2, LSP, LST1, LST2 = 0, 24576, 0, 49152, 0, 1024
STA, STB, STC = 0, 25088, 50176
K1_LDS = 67584 + 3 * 25088
RING = 60
LOOKAHEAD = 16
BURST = int(os.environ.get('BURST', '6'))
WB = int(os.environ.get('WB', '0'))
PER = int(os.environ.get('PER', '60'))
CAP = int(os.environ.get('CAP', '20'))


def gen_k1():
    k = K()
    header(k, 'temporal_kernel')
    k.op(f's_cmp_ge_u32 s2, {183 + NFOLD}')
    k.op('s_cbranch_scc1 K1_END')
    k.op(f's_cmp_lt_u32 s2, {NFOLD}')
    k.op('s_cbranch_scc1 K0_FOLD')
    k.op(f's_sub_u32 s2, s2, {NFOLD}')
    k.op('s_load_dwordx2 s[4:5], s[0:1], 0')
    k.op('s_load_dwordx4 s[48:51], s[0:1], 48')
    k.op('v_lshrrev_b32 v1, 6, v0')
    k.op('v_readfirstlane_b32 s16, v1')
    stamp_init(k, 182)
    stamp(k, 14, real=True)
    stamp(k, 12)
    k.op('v_and_b32 v10, 63, v0')
    k.op('v_lshlrev_b32 v1, 4, v10')
    k.op('v_and_b32 v11, 31, v10')
    k.op('v_lshrrev_b32 v12, 5, v10')
    k.op('v_lshrrev_b32 v13, 3, v11')
    k.op('v_and_b32 v14, 7, v11')
    k.op('s_lshl_b32 s18, s2, 2')
    k.op('v_add_u32 v15, s18, v13')
    k.op('v_cmp_gt_u32 s[30:31], 7, v14')
    k.op('s_movk_i32 s19, 729')
    k.op('v_cmp_gt_u32 s[32:33], s19, v15')
    k.op('s_and_b64 s[30:31], s[30:31], s[32:33]')
    k.op('v_mul_lo_u32 v2, v14, s19')
    k.op('v_add_u32 v2, v2, v15')
    k.op('s_movk_i32 s19, 768')
    k.op('v_mul_lo_u32 v2, v2, s19')
    k.op('v_lshl_add_u32 v2, v12, 3, v2')
    k.op('s_mul_i32 s19, s16, 192')
    k.op('v_add_u32 v2, s19, v2')
    k.op(f'v_mov_b32 v248, {BIG}')
    k.op('v_cndmask_b32 v2, v248, v2, s[30:31]')
    k.op('s_mul_i32 s17, s16, 73728')
    k.op('s_waitcnt lgkmcnt(0)')
    srd(k, 8, 4, XBYTES)
    srd(k, 12, 50, WS_BYTES)
    srd(k, 56, 48, 256)
    XF, ACC, PK, BF, S_ = 16, 64, 112, 136, 232
    GA = 13
    for i in range(6):
        for h in range(2):
            k.vmem(f'buffer_load_dwordx2 {v(PK + 4 * i + 2 * h, 2)}, v2, s[8:11], 0 offen offset:{32 * i + 16 * h}',
                   ('x', i, h))
    segs = [W1, W2, W3]

    def poll(off, n, done):
        lab = k.newlabel('K1_POLL')
        k.op(f'v_mov_b32 v10, {off}')
        k.op('s_mov_b32 s46, 400000')
        k.label(lab)
        if n == 2:
            k.op('buffer_load_dwordx2 v[254:255], v10, s[56:59], 0 offen sc1')
            k.op('s_waitcnt vmcnt(0)')
            k.op('v_min_u32 v11, v254, v255')
        else:
            k.op('buffer_load_dword v11, v10, s[56:59], 0 offen sc1')
            k.op('s_waitcnt vmcnt(0)')
        k.vm = []
        k.op('v_readfirstlane_b32 s47, v11')
        k.op('s_cmp_ge_u32 s47, 36')
        k.op(f's_cbranch_scc1 {done}')
        k.op('s_sleep 8')
        k.op('s_sub_u32 s46, s46, 1')
        k.op('s_cmp_lg_u32 s46, 0')
        k.op(f's_cbranch_scc1 {lab}')

    def gate(seg):
        done = k.newlabel('K1_PD')
        if seg == 0:
            k.op('s_cmp_lg_u32 s16, 0')
            k.op(f's_cbranch_scc1 {done}')
            poll(READY, 2, done)
            k.label(done)
            k.op('s_waitcnt vmcnt(0)')
            k.vm = []
            k.op('s_barrier')
        elif seg == 2:
            k.wait_vm('f3')
            k.op('v_readfirstlane_b32 s47, v11')
            k.op('s_cmp_ge_u32 s47, 36')
            k.op(f's_cbranch_scc1 {done}')
            vm0 = list(k.vm)
            poll(READY + 8, 1, done)
            k.vm = vm0
            k.label(done)

    def wload(idx):
        seg, kk = idx // 72, idx % 72
        if kk == 0:
            gate(seg)
        if kk % 4 == 0:
            k.op(f's_add_u32 s18, s17, {segs[seg] + kk * 1024}')
        if len(k.vm) >= CAP:
            k.op(f's_waitcnt vmcnt({CAP - 1})')
            k.vm = k.vm[len(k.vm) - (CAP - 1):]
        k.vmem(f'buffer_load_dwordx4 {a(4 * (idx % RING), 4)}, v1, s[12:15], s18 offen offset:{(kk % 4) * 1024} sc1',
               ('w', idx))

    def wq(idx):
        k.bg.append((('w', idx), lambda: wload(idx)))

    for idx in range(RING):
        wq(idx)
    k.bg_period = PER
    k.hold += 1

    with k.nobg():
        for g in range(4):
            k.op(f'v_cmp_eq_u32 s[{20 + 2 * g}:{21 + 2 * g}], {g}, v13')
    k.op('v_mul_u32_u24 v3, 784, v11')
    k.op('v_add_u32 v3, 0x10800, v3')
    k.op('s_mul_i32 s19, s16, 192')
    k.op('v_add_u32 v3, s19, v3')
    k.op('v_lshl_add_u32 v4, v12, 3, v3')
    k.op('v_lshl_add_u32 v3, v12, 4, v3')
    k.op('v_lshrrev_b32 v249, 3, v10')
    k.op('v_and_b32 v250, 7, v10')
    k.op('s_lshl_b32 s19, s16, 3')
    k.op('v_add_u32 v251, s19, v249')
    k.op('v_mul_u32_u24 v5, 784, v251')
    k.op('v_lshl_add_u32 v5, v250, 4, v5')
    k.op('v_add_u32 v5, 0x10800, v5')
    k.op('s_lshl_b32 s42, s2, 2')
    k.op('s_add_u32 s42, s42, s16')
    k.op('s_and_b32 s43, s42, 3')
    k.op('s_lshl_b32 s43, s43, 2')
    k.op('s_bfe_u32 s44, s42, 0x20002')
    k.op('s_or_b32 s43, s43, s44')
    k.op(f'v_mul_u32_u24 v253, {736 * 768 // 256}, v249')
    k.op('v_lshlrev_b32 v253, 8, v253')
    k.op('s_mul_i32 s44, s42, 768')
    k.op('v_add_u32 v253, s44, v253')
    with k.nobg():
        k.op('v_cmp_gt_u32 s[32:33], 7, v249')
        k.op('s_cmp_lt_u32 s42, 729')
        k.op('s_cselect_b64 s[32:33], s[32:33], 0')
    k.op('v_cndmask_b32 v253, v248, v253, s[32:33]')
    k.op('v_lshl_add_u32 v13, v250, 4, v253')
    k.op('s_lshr_b32 s45, s42, 5')
    k.op(f's_mul_i32 s45, s45, {TILE}')
    k.op('s_and_b32 s46, s42, 31')
    k.op('s_lshl_b32 s46, s46, 8')
    k.op('s_add_u32 s45, s45, s46')
    k.op('s_sub_u32 s45, s45, s44')
    k.op('v_add_u32 v253, s45, v253')
    k.op('v_xor_b32 v251, s43, v250')
    k.op('v_lshl_add_u32 v14, v251, 4, v253')
    k.op('v_xor_b32 v251, 8, v251')
    k.op('v_lshl_add_u32 v15, v251, 4, v253')
    k.op('v_lshlrev_b32 v7, 3, v11')
    k.op('v_add_u32 v7, 0x10000, v7')
    k.op('s_lshl_b32 s19, s16, 8')
    k.op('v_add_u32 v6, s19, v7')
    k.op('v_and_b32 v249, 15, v10')
    k.op('v_lshrrev_b32 v250, 2, v249')
    k.op('v_lshl_add_u32 v250, v12, 2, v250')
    k.op('v_lshlrev_b32 v8, 4, v250')
    k.op('v_bfe_u32 v250, v10, 4, 1')
    k.op('v_lshl_add_u32 v8, v250, 10, v8')
    k.op('v_and_b32 v250, 1, v249')
    k.op('v_lshl_add_u32 v8, v250, 9, v8')
    k.op('v_bfe_u32 v250, v249, 1, 1')
    k.op('v_lshl_add_u32 v8, v250, 3, v8')
    k.op('s_mul_i32 s19, s16, 6144')
    k.op('v_add_u32 v8, s19, v8')
    k.op('v_add_u32 v9, s19, v1')
    k.op('s_mov_b32 s28, 0')
    k.op('s_mov_b32 s29, -1')
    k.op('s_mov_b32 s34, 0xffff0000')
    k.op('s_mov_b32 s35, 0x3f803f80')
    k.op(f's_mov_b32 s36, {f32hex(1.0 / 384)}')
    k.op(f's_mov_b32 s37, {f32hex(1e-5)}')
    k.op('s_mov_b32 s40, 0xff800000')

    def unpack():
        for j in range(24):
            k.op(f'v_lshlrev_b32 {v(XF + 2 * j)}, 16, {v(PK + j)}')
            k.op(f'v_and_b32 {v(XF + 2 * j + 1)}, s34, {v(PK + j)}')

    def xhalf_sum(r, tmp):
        k.op(f'v_mov_b32 {v(tmp)}, {v(r)}')
        k.op(f'v_permlane32_swap_b32 {v(r)}, {v(tmp)}')
        k.op(f'v_add_f32 {v(r)}, {v(r)}, {v(tmp)}')

    def ln_stats(st):
        for c in range(4):
            k.op(f'v_mov_b32 {v(248 + c)}, 0')
        for j in range(24):
            c = j % 2
            k.op(f'v_dot2c_f32_bf16 {v(248 + c)}, s35, {v(PK + j)}')
            k.op(f'v_dot2c_f32_bf16 {v(250 + c)}, {v(PK + j)}, {v(PK + j)}')
        k.op('v_add_f32 v248, v248, v249')
        k.op('v_add_f32 v249, v250, v251')
        k.op('v_mov_b32 v250, v248')
        k.op('v_mov_b32 v251, v249')
        k.op('v_permlane32_swap_b32 v248, v250')
        k.op('v_permlane32_swap_b32 v249, v251')
        k.op('v_add_f32 v248, v248, v250')
        k.op('v_add_f32 v249, v249, v251')
        k.ds(f'ds_write_b64 v6, v[248:249] offset:{st}')
        if not k.hold:
            k.bg_issue(BURST)
        k.barrier()
        for w in range(4):
            k.ds(f'ds_read_b64 {v(S_ + 2 * w, 2)}, v7 offset:{st + 256 * w}', 'st')

    def ln_apply(src):
        k.bg_issue(WB)
        k.wait_lg('st')
        k.op(f'v_pk_add_f32 v[248:249], {v(S_, 2)}, {v(S_ + 2, 2)}')
        k.op(f'v_pk_add_f32 v[250:251], {v(S_ + 4, 2)}, {v(S_ + 6, 2)}')
        k.op('v_pk_add_f32 v[248:249], v[248:249], v[250:251]')
        k.op('v_mul_f32 v248, s36, v248')
        k.op('v_mul_f32 v249, s36, v249')
        k.op('v_fma_f32 v249, -v248, v248, v249')
        k.op('v_max_f32 v249, 0, v249')
        k.op('v_add_f32 v249, s37, v249')
        k.op('v_rsq_f32 v250, v249')
        k.op('v_mul_f32 v252, v248, v250')
        for j in range(24):
            tp = 254 if j % 2 else 248
            k.op(f'v_pk_fma_f32 {v(tp, 2)}, {v(src + 2 * j, 2)}, v[250:251], v[252:253] '
                 f'op_sel_hi:[1,0,0] neg_lo:[0,0,1] neg_hi:[0,0,1]')
            k.op(f'v_cvt_pk_bf16_f32 {v(PK + j)}, {v(tp)}, {v(tp + 1)}')

    def share(region):
        for i in range(6):
            k.ds(f'ds_write_b128 v9, {v(PK + 4 * i, 4)} offset:{region + 1024 * i}')
        if not k.hold:
            k.bg_issue(BURST)
        k.barrier()
        for kc in range(24):
            k.ds(f'ds_read_b128 {v(BF + 4 * kc, 4)}, v1 offset:{region + 1024 * kc}', ('b', kc))

    def gemm(seg, hook=None):
        for jt in range(3):
            for kc in range(24):
                idx = seg * 72 + jt * 24 + kc
                k.wait_vm(('w', idx))
                if jt == 0:
                    k.wait_lg(('b', kc))
                c = '0' if kc == 0 else v(ACC + 16 * jt, 16)
                k.op(f'v_mfma_f32_32x32x16_bf16 {v(ACC + 16 * jt, 16)}, {a(4 * (idx % RING), 4)}, '
                     f'{v(BF + 4 * kc, 4)}, {c}')
                if idx + RING < 216:
                    wq(idx + RING)
                if idx + LOOKAHEAD < 216:
                    k.bg_flush_to(('w', idx + LOOKAHEAD))
                if hook and not k.bg and idx + RING >= 216:
                    hook()
                    hook = None

    def pack_acc():
        for j in range(24):
            k.op(f'v_cvt_pk_bf16_f32 {v(PK + j)}, {v(ACC + 2 * j)}, {v(ACC + 2 * j + 1)}')

    def st_write(img, natural):
        for i in range(6):
            if natural:
                for h in range(2):
                    k.ds(f'ds_write_b64 v4, {v(PK + 4 * i + 2 * h, 2)} offset:{img + 32 * i + 16 * h}')
            else:
                k.ds(f'ds_write_b128 v3, {v(PK + 4 * i, 4)} offset:{img + 32 * i}')

    def st_store(img, area, natural, tmp):
        for j in range(6):
            k.ds(f'ds_read_b128 {v(tmp + 4 * j, 4)}, v5 offset:{img + 128 * j}', ('sr', j))
        k.op(f's_mov_b32 s41, {area}')
        for j in range(6):
            k.wait_lg(('sr', j))
            if not natural and j in (2, 4):
                k.op(f's_mov_b32 s41, {area + (j // 2) * 8192}')
            if natural:
                k.vmem(f'buffer_store_dwordx4 {v(tmp + 4 * j, 4)}, {v(GA)}, s[12:15], s41 offen offset:{128 * j} sc1')
            else:
                k.vmem(f'buffer_store_dwordx4 {v(tmp + 4 * j, 4)}, {v(GA + 1 + j % 2)}, s[12:15], s41 offen '
                       f'sc1')

    stamp(k, 0)
    k.wait_vm(('x', 5, 1))
    stamp(k, 1)
    ln_stats(LST1)
    unpack()
    ln_apply(XF)
    k.hold -= 1
    k.bg_issue(12)
    share(LH)
    stamp(k, 2)
    gemm(0)
    stamp(k, 3)
    for i in range(6):
        k.ds(f'ds_read_b128 {v(BF + 4 * i, 4)}, v9 offset:{LH + 1024 * i}', ('o', i))
    pack_acc()
    for i in range(6):
        k.wait_lg(('o', i))
        c = '0' if i == 0 else v(S_, 16)
        k.op(f'v_mfma_f32_32x32x16_bf16 {v(S_, 16)}, {v(BF + 4 * i, 4)}, {v(PK + 4 * i, 4)}, {c}')
    k.op(f'v_mov_b32 v10, {READY + 8}')
    k.vmem('buffer_load_dword v11, v10, s[56:59], 0 offen sc1', 'f3')
    k.op('s_lshl_b32 s19, s16, 12')
    k.op('v_add_u32 v248, s19, v1')
    for q in range(4):
        k.ds(f'ds_write_b128 v248, {v(S_ + 4 * q, 4)} offset:{LSP + 1024 * q}')
    k.bg_issue(BURST)
    k.barrier()
    SR = BF + 24
    for w in range(4):
        for q in range(4):
            k.ds(f'ds_read_b128 {v(SR + 16 * w + 4 * q, 4)}, v1 offset:{LSP + 4096 * w + 1024 * q}', ('sp', w))
    for c in range(3):
        for m in range(2):
            for p in range(2):
                k.ds(f'ds_read_b64_tr_b16 {v(BF + 8 * c + 4 * m + 2 * p, 2)}, v8 '
                     f'offset:{LH + c * 2048 + m * 256 + p * 128}', ('vt', c, m))
    k.bg_issue(WB)
    k.wait_lg(('sp', 3))
    for r in range(0, 16, 2):
        k.op(f'v_pk_add_f32 {v(S_ + r, 2)}, {v(SR + r, 2)}, {v(SR + 16 + r, 2)}')
        k.op(f'v_pk_add_f32 {v(SR + 32 + r, 2)}, {v(SR + 32 + r, 2)}, {v(SR + 48 + r, 2)}')
    for r in range(0, 16, 2):
        k.op(f'v_pk_add_f32 {v(S_ + r, 2)}, {v(S_ + r, 2)}, {v(SR + 32 + r, 2)}')
    for i in range(4):
        k.op(f'v_cndmask_b32 {v(248 + i)}, {v(S_ + i)}, {v(S_ + 4 + i)}, s[22:23]')
    for i in range(4):
        k.op(f'v_cndmask_b32 {v(248 + i)}, {v(248 + i)}, {v(S_ + 8 + i)}, s[24:25]')
    for i in range(4):
        k.op(f'v_cndmask_b32 {v(248 + i)}, {v(248 + i)}, {v(S_ + 12 + i)}, s[26:27]')
    k.op('v_mov_b32 v252, s40')
    k.op('v_cndmask_b32 v251, v251, v252, s[28:29]')
    k.op('v_max3_f32 v252, v248, v249, v250')
    k.op('v_max_f32 v252, v252, v251')
    k.op('v_mov_b32 v253, v252')
    k.op('v_permlane32_swap_b32 v252, v253')
    k.op('v_max_f32 v252, v252, v253')
    for i in range(4):
        k.op(f'v_sub_f32 {v(248 + i)}, {v(248 + i)}, v252')
    for i in range(4):
        k.op(f'v_exp_f32 {v(248 + i)}, {v(248 + i)}')
    k.op('v_add_f32 v252, v248, v249')
    k.op('v_add_f32 v253, v250, v251')
    k.op('v_add_f32 v252, v252, v253')
    xhalf_sum(252, 253)
    k.op('v_rcp_f32 v252, v252')
    for i in range(4):
        k.op(f'v_mul_f32 {v(248 + i)}, {v(248 + i)}, v252')
    k.op('v_cvt_pk_bf16_f32 v252, v248, v249')
    k.op('v_cvt_pk_bf16_f32 v253, v250, v251')
    PF = BF + 88
    for g in range(4):
        for j in range(2):
            k.op(f'v_cndmask_b32 {v(PF + 2 * g + j)}, 0, {v(252 + j)}, s[{20 + 2 * g}:{21 + 2 * g}]')
    for c in range(3):
        for m in range(2):
            k.wait_lg(('vt', c, m))
            cc = '0' if m == 0 else v(ACC + 16 * c, 16)
            k.op(f'v_mfma_f32_32x32x16_bf16 {v(ACC + 16 * c, 16)}, {v(BF + 8 * c + 4 * m, 4)}, '
                 f'{v(PF + 4 * m, 4)}, {cc}')
    pack_acc()
    share(LO_)
    stamp(k, 4)
    gemm(1)
    stamp(k, 5)
    for j in range(0, 48, 2):
        k.op(f'v_pk_add_f32 {v(ACC + j, 2)}, {v(ACC + j, 2)}, {v(XF + j, 2)}')
    pack_acc()
    st_write(STA, True)
    ln_stats(LST2)
    ln_apply(ACC)
    st_write(STB, False)
    share(LH2)
    stamp(k, 6)

    def late_stores():
        st_store(STA, X1, True, XF)
        st_store(STB, H2, False, XF + 24)
    gemm(2, late_stores)
    stamp(k, 7)
    pack_acc()
    st_write(STC, False)
    k.barrier()
    st_store(STC, Q2, False, BF)
    if STAMP:
        k.wait_vm_all()
    stamp(k, 8)
    stamp(k, 15, real=True)
    k.label('K1_END')
    k.op('s_endpgm')
    gen_fold(k)
    return k.text(), descriptor('temporal_kernel', 256 + 4 * RING, 256, 80)


K2_LDS = 163840


def gen_k2():
    k = K()
    header(k, 'spatial_kernel')
    k.op('s_cmp_ge_u32 s2, 184')
    k.op('s_cbranch_scc1 K2_END')
    k.op('s_and_b32 s17, s2, 7')
    k.op('s_cmp_eq_u32 s17, 7')
    k.op('s_cbranch_scc1 K2_END')
    k.op('s_lshr_b32 s18, s2, 3')
    k.op('s_load_dwordx2 s[4:5], s[0:1], 40')
    k.op('s_load_dwordx2 s[6:7], s[0:1], 56')
    k.op('v_lshrrev_b32 v1, 6, v0')
    k.op('v_readfirstlane_b32 s16, v1')
    stamp_init(k, 182)
    stamp(k, 14, 14, 15, real=True)
    stamp(k, 12, 14, 15)
    k.op('v_and_b32 v8, 63, v0')
    k.op('v_lshlrev_b32 v1, 4, v8')
    k.op('v_and_b32 v9, 31, v8')
    k.op('v_lshrrev_b32 v10, 5, v8')
    k.op('s_mul_i32 s19, s16, 40960')
    k.op(f's_mul_i32 s20, s17, {FRAME}')
    k.op(f's_mul_i32 s21, s18, {TILE}')
    k.op('s_add_u32 s21, s21, s20')
    k.op(f's_mul_i32 s22, s16, {TILE}')
    k.op('s_add_u32 s22, s22, s20')
    k.op(f's_add_u32 s22, s22, {H2}')
    k.op('s_mul_i32 s28, s16, 73728')
    k.op('s_waitcnt lgkmcnt(0)')
    srd(k, 8, 4, XBYTES)
    srd(k, 12, 6, WS_BYTES)
    MREF, L_ = 6, 7
    S_, P_, O_ = 16, 32, 40
    KAD, VAD = 232, 240
    QA, KA, VA = 0, 96, 128
    KR, VR = 8, 8

    def blk_off(it, blk):
        return (it % 2) * 16384 + blk * 8192 if blk < 2 else 32768

    def dma1(it, blk, q):
        if q % 4 == 0:
            k.op(f's_add_u32 m0, s19, {blk_off(it, blk) + q * 1024}')
            k.op(f's_add_u32 s27, s22, {it * 4 * TILE + blk * 8192 + q * 1024}')
        k.vmem(f'buffer_load_dwordx4 v1, s[12:15], s27 offen offset:{(q % 4) * 1024} lds', ('kv', it, 0 if blk < 2 else 1))

    def dma(it, blks):
        for blk in blks:
            for q in range(8):
                k.bg.append((('kv', it, 0 if blk < 2 else 1), (lambda a_=blk, b_=q: dma1(it, a_, b_))))

    def wslot(idx):
        return 160 + 4 * idx if idx < 24 else (4 * (idx - 24) if idx < 64 else 160 + 4 * (idx - 64))

    def wload(idx):
        k.op(f's_add_u32 s29, s28, {W4 + idx * 1024}')
        k.vmem(f'buffer_load_dwordx4 {a(wslot(idx), 4)}, v1, s[12:15], s29 offen', ('w', idx))

    def wq(idx):
        k.bg.append((('w', idx), lambda: wload(idx)))

    k.op(f's_add_u32 s23, s21, {Q2}')
    k.op('s_mul_i32 s30, s16, 6144')
    for i in range(6):
        k.op(f's_add_u32 s31, s30, {i * 1024}')
        k.op('s_cmp_ge_u32 s31, 16384')
        k.op('s_cselect_b32 s35, 24576, 0')
        k.op('s_add_u32 s35, s35, 16384')
        k.op('s_add_u32 m0, s31, s35')
        k.op('s_add_u32 s32, s31, s23')
        k.vmem('buffer_load_dwordx4 v1, s[12:15], s32 offen lds', 'q')
    dma(0, [0])
    k.bg_flush()
    dma(0, [1, 2])
    k.bg_period = 40
    k.op('v_and_b32 v11, 3, v9')
    k.op('v_lshlrev_b32 v11, 2, v11')
    k.op('v_bfe_u32 v12, v9, 2, 2')
    k.op('v_or_b32 v11, v11, v12')
    k.op('v_xor_b32 v11, v11, v10')
    k.op('v_lshlrev_b32 v12, 8, v9')
    for e in range(8):
        k.op(f'v_xor_b32 v13, {2 * e}, v11')
        k.op(f'v_lshl_add_u32 {v(KAD + e)}, v13, 4, v12')
    k.op('v_and_b32 v11, 15, v8')
    k.op('v_lshrrev_b32 v12, 2, v11')
    k.op('v_lshl_add_u32 v13, v10, 2, v12')
    k.op('v_lshlrev_b32 v13, 8, v13')
    k.op('v_add_u32 v13, s19, v13')
    k.op('v_bfe_u32 v14, v11, 1, 1')
    k.op('v_lshl_add_u32 v13, v14, 3, v13')
    k.op('v_bfe_u32 v14, v8, 4, 1')
    k.op('v_and_b32 v15, 1, v11')
    k.op('v_lshl_add_u32 v14, v14, 1, v15')
    k.op('v_lshl_add_u32 v12, v12, 2, v10')
    k.op('v_xor_b32 v14, v14, v12')
    for c4 in range(4):
        k.op(f's_add_u32 s26, s16, {c4}')
        k.op('s_and_b32 s26, s26, 3')
        k.op('s_lshl_b32 s26, s26, 2')
        for p in range(2):
            k.op(f'v_xor_b32 v15, {2 * p}, v14')
            k.op('v_xor_b32 v15, s26, v15')
            k.op(f'v_lshl_add_u32 {v(VAD + 2 * c4 + p)}, v15, 4, v13')
            if p:
                k.op(f'v_add_u32 {v(VAD + 2 * c4 + p)}, 2048, {v(VAD + 2 * c4 + p)}')
    k.op(f's_mov_b32 s24, {f32hex(24.0)}')
    k.op('s_mov_b32 s25, 0xff800000')
    k.op(f'v_mov_b32 {v(L_)}, 0')
    stamp(k, 0, 14, 15)
    k.bg_issue(4)
    k.wait_vm('q')
    k.op('s_barrier')
    for kc in range(24):
        blk = kc // 8
        off = 16384 + blk * 8192 if blk < 2 else 57344
        k.ds(f'ds_read_b128 {a(QA + 4 * kc, 4)}, {v(KAD + kc % 8)} offset:{off}', ('qf', kc))
    for e in range(8):
        k.op(f'v_add_u32 {v(KAD + e)}, s19, {v(KAD + e)}')
    k.bg_flush()
    k.barrier()

    ct_order = [8, 9, 10, 11, 0, 1, 2, 3, 4, 5, 6, 7]
    wnext = 0
    for it in range(6):
        if it == 5:
            k.bg_flush()
            k.op('s_cmp_eq_u32 s16, 3')
            k.op('s_cbranch_scc1 K2_LOOPDONE')
        stamp(k, 1 + it, 14, 15)
        k.bg_period = 60
        if it < 5:
            dma(it + 1, [0, 1])
            if it >= 1:
                for _ in range(6):
                    wq(wnext); wnext += 1

        def kread(kc, it=it):
            k.ds(f'ds_read_b128 {a(KA + 4 * (kc % KR), 4)}, {v(KAD + kc % 8)} offset:{blk_off(it, kc // 8)}', ('k', kc))
        if it == 0 or it == 5:
            k.wait_vm(('kv', it, 0))
            for kc in range(KR - 2):
                kread(kc)
        for kc in range(24):
            nk = kc + KR - 2
            if nk < 24:
                if nk == 16:
                    k.wait_vm(('kv', it, 1))
                kread(nk)
            if kc % 2 == 0:
                k.wait_lg(('k', kc + 1))
            c = '0' if kc == 0 else v(S_, 16)
            k.op(f'v_mfma_f32_32x32x16_bf16 {v(S_, 16)}, {a(KA + 4 * (kc % KR), 4)}, {a(QA + 4 * kc, 4)}, {c}')
        vlist = [(m, ct) for m in range(2) for ct in ct_order]

        def vread(j):
            m, ct = vlist[j]
            for p in range(2):
                k.ds(f'ds_read_b64_tr_b16 {a(VA + 4 * (j % VR) + 2 * p, 2)}, {v(VAD + 2 * (ct % 4) + p)} '
                     f'offset:{blk_off(it, ct // 4) + m * 4096}', ('v', j))
        for j in range(VR - 2):
            vread(j)
        if it == 5:
            with k.nobg():
                k.op('s_cmp_lg_u32 s16, 2')
                k.op('s_cbranch_scc1 K2_NOMASK')
                snap = k.snapshot()
                for r in (13, 14, 15):
                    k.op(f'v_mov_b32 {v(S_ + r)}, s25')
                k.op('s_mov_b32 exec_lo, 0')
                k.op(f'v_mov_b32 {v(S_ + 12)}, s25')
                k.op('s_mov_b32 exec_lo, -1')
                k.nop(4)
                k.label('K2_NOMASK')
                k.restore(snap)
        k.op(f'v_max3_f32 v11, {v(S_)}, {v(S_ + 1)}, {v(S_ + 2)}')
        k.op(f'v_max3_f32 v12, {v(S_ + 3)}, {v(S_ + 4)}, {v(S_ + 5)}')
        k.op(f'v_max3_f32 v11, v11, {v(S_ + 6)}, {v(S_ + 7)}')
        k.op(f'v_max3_f32 v12, v12, {v(S_ + 8)}, {v(S_ + 9)}')
        k.op(f'v_max3_f32 v11, v11, {v(S_ + 10)}, {v(S_ + 11)}')
        k.op(f'v_max3_f32 v12, v12, {v(S_ + 12)}, {v(S_ + 13)}')
        k.op(f'v_max3_f32 v11, v11, {v(S_ + 14)}, {v(S_ + 15)}')
        k.op('v_max_f32 v11, v11, v12')
        k.op('v_mov_b32 v12, v11')
        k.op('v_permlane32_swap_b32 v11, v12')
        k.op('v_max_f32 v11, v11, v12')
        if it == 0:
            k.op(f'v_mov_b32 {v(MREF)}, v11')
        else:
            lab = k.newlabel('K2_NORESC')
            with k.nobg():
                k.op(f'v_sub_f32 v12, v11, {v(MREF)}')
                k.op('v_cmp_lt_f32 vcc, s24, v12')
                k.nop(2)
                k.op(f's_cbranch_vccz {lab}')
                snap = k.snapshot()
                clk0 = k.clk
                k.op(f'v_max_f32 v11, v11, {v(MREF)}')
                k.op(f'v_sub_f32 v12, {v(MREF)}, v11')
                k.op('v_exp_f32 v12, v12')
                k.op(f'v_mov_b32 {v(MREF)}, v11')
                k.op(f'v_mul_f32 {v(L_)}, {v(L_)}, v12')
                for r in range(192):
                    k.op(f'v_mul_f32 {v(O_ + r)}, {v(O_ + r)}, v12')
                k.nop(4)
                k.label(lab)
                k.restore(snap)
                k.clk = clk0
        for r in range(0, 8):
            k.op(f'v_sub_f32 {v(S_ + r)}, {v(S_ + r)}, {v(MREF)}')
        for r in range(0, 8):
            k.op(f'v_exp_f32 {v(S_ + r)}, {v(S_ + r)}')
        for r in range(0, 8, 2):
            k.op(f'v_cvt_pk_bf16_f32 {v(P_ + r // 2)}, {v(S_ + r)}, {v(S_ + r + 1)}')
        filler = []
        for r in range(8, 16):
            filler.append(f'v_sub_f32 {v(S_ + r)}, {v(S_ + r)}, {v(MREF)}')
        for r in range(8, 16):
            filler.append(f'v_exp_f32 {v(S_ + r)}, {v(S_ + r)}')
        for r in range(8, 16, 2):
            filler.append(f'v_cvt_pk_bf16_f32 {v(P_ + r // 2)}, {v(S_ + r)}, {v(S_ + r + 1)}')
        filler.append(f'v_add_f32 v11, {v(S_)}, {v(S_ + 1)}')
        filler.append(f'v_add_f32 v12, {v(S_ + 2)}, {v(S_ + 3)}')
        for r in range(4, 16, 2):
            filler.append(f'v_add_f32 v11, v11, {v(S_ + r)}')
            filler.append(f'v_add_f32 v12, v12, {v(S_ + r + 1)}')
        filler.append('v_add_f32 v11, v11, v12')
        filler.append(f'v_add_f32 {v(L_)}, {v(L_)}, v11')
        for j in range(24):
            m, ct = vlist[j]
            nj = j + VR - 2
            if nj < 24:
                vread(nj)
            if m == 1:
                while len(filler) > 16:
                    k.op(filler.pop(0))
            if j % 2 == 0:
                k.wait_lg(('v', j + 1))
            c = '0' if (it == 0 and m == 0) else v(O_ + 16 * ct, 16)
            k.op(f'v_mfma_f32_32x32x16_bf16 {v(O_ + 16 * ct, 16)}, {a(VA + 4 * (j % VR), 4)}, '
                 f'{v(P_ + 4 * m, 4)}, {c}')
            for _ in range(4):
                if filler:
                    k.op(filler.pop(0))
            if j == 15 and it < 5:
                k.bg_flush()
                k.bg_period = 30
                dma(it + 1, [2])
            if j == 20 and it < 4:
                k.wait_vm(('kv', it + 1, 0))
                for kc in range(KR - 2):
                    kread(kc, it + 1)
        while filler:
            k.op(filler.pop(0))
    k.bg_flush()
    k.nop(12)
    k.label('K2_LOOPDONE')
    k.nop(12)
    k.wait_vm_all()
    k.wait_lg_all()
    stamp(k, 7, 14, 15)
    k.bg_period = 60
    k.op('v_lshrrev_b32 v11, 3, v8')
    k.op('s_lshl_b32 s26, s16, 3')
    k.op('v_add_u32 v11, s26, v11')
    k.op('v_and_b32 v12, 7, v8')
    k.op('v_mul_u32_u24 v5, 784, v11')
    k.op('v_lshl_add_u32 v5, v12, 4, v5')
    k.op('v_mul_u32_u24 v13, 768, v11')
    k.op('v_lshl_add_u32 v13, v12, 4, v13')
    k.op(f's_add_u32 s26, s21, {X1}')
    XR = 232
    for j in range(6):
        k.vmem(f'buffer_load_dwordx4 {v(XR + 4 * j, 4)}, v13, s[12:15], s26 offen offset:{128 * j}', ('x1', j))
    with k.nobg():
        k.op('s_lshl_b32 s26, s18, 5')
        k.op('v_add_u32 v11, s26, v11')
        k.op('s_movk_i32 s27, 729')
        k.op('v_cmp_gt_u32 vcc, s27, v11')
        k.op('s_mul_i32 s27, s17, 729')
        k.op('s_add_u32 s27, s27, s26')
        k.op('s_mul_i32 s27, s27, 768')
        k.op('v_add_u32 v13, s27, v13')
        k.op(f'v_mov_b32 v12, {BIG}')
        k.op('v_cndmask_b32 v15, v12, v13, vcc')
    for idx in range(wnext, 64):
        wq(idx)
    k.op(f'v_mov_b32 v12, {v(L_)}')
    k.op(f'v_permlane32_swap_b32 {v(L_)}, v12')
    k.op(f'v_add_f32 {v(L_)}, {v(L_)}, v12')
    k.op('v_lshlrev_b32 v11, 3, v9')
    k.op('v_add_u32 v12, s19, v11')
    k.ds(f'ds_write_b64 v12, {v(MREF, 2)} offset:36864')
    k.op('v_add_u32 v13, s19, v1')
    for e in range(1, 4):
        for b in range(3):
            for q in range(4):
                k.ds(f'ds_write_b128 v13, {v(O_ + 16 * (4 * b + e) + 4 * q, 4)} '
                     f'offset:{(e - 1) * 12288 + b * 4096 + q * 1024}')
    for e in range(1, 4):
        k.op(f's_sub_u32 s26, s16, {e}')
        k.op('s_and_b32 s26, s26, 3')
        k.op('s_mul_i32 s26, s26, 40960')
        k.op(f'v_add_u32 v{1 + e}, s26, v1')
        k.op(f'v_add_u32 {v(P_ + e)}, s26, v11')
    k.bg_issue(8)
    k.barrier()
    k.op(f'v_mov_b32 {v(S_)}, {v(MREF)}')
    k.op(f'v_mov_b32 {v(S_ + 1)}, {v(L_)}')
    for e in range(1, 4):
        k.ds(f'ds_read_b64 {v(S_ + 2 * e, 2)}, {v(P_ + e)} offset:36864', 'st')
    PKR = 16
    for e in range(1, 4):
        for b in range(3):
            for q in range(4):
                k.ds(f'ds_read_b128 {v(O_ + 16 * (4 * b + e) + 4 * q, 4)}, v{1 + e} '
                     f'offset:{(e - 1) * 12288 + b * 4096 + q * 1024}', ('p', e))
    k.wait_lg('st')
    k.op(f'v_max3_f32 v12, {v(S_)}, {v(S_ + 2)}, {v(S_ + 4)}')
    k.op(f'v_max_f32 v12, v12, {v(S_ + 6)}')
    for w in range(4):
        k.op(f'v_sub_f32 {v(S_ + 2 * w)}, {v(S_ + 2 * w)}, v12')
    for w in range(4):
        k.op(f'v_exp_f32 {v(S_ + 2 * w)}, {v(S_ + 2 * w)}')
    k.op(f'v_mul_f32 v13, {v(S_)}, {v(S_ + 1)}')
    for w in range(1, 4):
        k.op(f'v_fmac_f32 v13, {v(S_ + 2 * w)}, {v(S_ + 2 * w + 1)}')
    k.op('v_rcp_f32 v13, v13')
    for w in range(4):
        k.op(f'v_mul_f32 {v(S_ + 2 * w)}, {v(S_ + 2 * w)}, v13')
    for b in range(3):
        for r in range(0, 16, 2):
            o = O_ + 64 * b + r
            k.op(f'v_pk_mul_f32 {v(o, 2)}, {v(o, 2)}, {v(S_, 2)} op_sel_hi:[1,0]')
    for e in range(1, 4):
        k.wait_lg(('p', e))
        for b in range(3):
            for r in range(0, 16, 2):
                o = O_ + 64 * b + r
                k.op(f'v_pk_fma_f32 {v(o, 2)}, {v(o + 16 * e, 2)}, {v(S_ + 2 * e, 2)}, {v(o, 2)} op_sel_hi:[1,0,1]')
    for b in range(3):
        for j in range(8):
            o = O_ + 64 * b + 2 * j
            k.op(f'v_cvt_pk_bf16_f32 {v(PKR + 8 * b + j)}, {v(o)}, {v(o + 1)}')
    for b in range(3):
        for h in range(2):
            k.ds(f'ds_write_b128 v4, {v(PKR + 8 * b + 4 * h, 4)} offset:{24576 + 2048 * b + 1024 * h}')
    for x in range(1, 4):
        k.op(f'v_add_u32 v{1 + x}, {40960 * x}, v1')
    k.bg_flush()
    k.barrier()
    BF = 40
    stamp(k, 8, 13, 14)
    for kc in range(24):
        own = (kc % 8) // 2
        x = (own + 1) % 4
        k.ds(f'ds_read_b128 {v(BF + 4 * kc, 4)}, v{1 + x} offset:{24576 + 2048 * (kc // 8) + 1024 * (kc % 2)}', ('b', kc))
    k.op('v_mul_u32_u24 v11, 784, v9')
    k.op('s_mul_i32 s27, s16, 192')
    k.op('v_add_u32 v11, s27, v11')
    k.op('v_lshl_add_u32 v11, v10, 3, v11')
    ACC = 136
    for jt in range(3):
        for kc in range(24):
            idx = jt * 24 + kc
            k.wait_vm(('w', idx))
            if jt == 0:
                k.wait_lg(('b', kc))
            c = '0' if kc == 0 else v(ACC + 16 * jt, 16)
            k.op(f'v_mfma_f32_32x32x16_bf16 {v(ACC + 16 * jt, 16)}, {a(wslot(idx), 4)}, {v(BF + 4 * kc, 4)}, {c}')
            if idx < 8:
                wload(idx + 64)
    stamp(k, 9, 13, 14)
    for j in range(24):
        k.op(f'v_cvt_pk_bf16_f32 {v(PKR + j)}, {v(ACC + 2 * j)}, {v(ACC + 2 * j + 1)}')
        if j % 2:
            i, h = j // 4, (j // 2) % 2
            k.ds(f'ds_write_b64 v11, {v(PKR + 4 * i + 2 * h, 2)} offset:{32 * i + 16 * h}')
    k.barrier()
    DR = 40
    for j in range(6):
        k.ds(f'ds_read_b128 {v(DR + 4 * j, 4)}, v5 offset:{128 * j}', ('d', j))
    k.op('s_mov_b32 s27, 0xffff0000')
    k.wait_vm(('x1', 5))
    for j in range(6):
        k.wait_lg(('d', j))
        for q in range(4):
            r = 4 * j + q
            t0 = 64 + 4 * (q % 2)
            k.op(f'v_lshlrev_b32 {v(t0)}, 16, {v(XR + r)}')
            k.op(f'v_and_b32 {v(t0 + 1)}, s27, {v(XR + r)}')
            k.op(f'v_lshlrev_b32 {v(t0 + 2)}, 16, {v(DR + r)}')
            k.op(f'v_and_b32 {v(t0 + 3)}, s27, {v(DR + r)}')
            k.op(f'v_pk_add_f32 {v(t0, 2)}, {v(t0, 2)}, {v(t0 + 2, 2)}')
            k.op(f'v_cvt_pk_bf16_f32 {v(DR + r)}, {v(t0)}, {v(t0 + 1)}')
        k.vmem(f'buffer_store_dwordx4 {v(DR + 4 * j, 4)}, v15, s[8:11], 0 offen offset:{128 * j} sc1')
    if STAMP:
        k.wait_vm_all()
    stamp(k, 10, 13, 14)
    stamp(k, 15, 13, 14, real=True)
    k.label('K2_END')
    k.op('s_endpgm')
    return k.text(), descriptor('spatial_kernel', 512, 256, 80)


def main():
    out = []
    out.append(f'; @launch kernel=temporal_kernel grid=({183 + NFOLD},1,1) block=(256,1,1) lds={K1_LDS}')
    out.append(f'; @launch kernel=spatial_kernel grid=(184,1,1) block=(256,1,1) lds={K2_LDS}')
    out.append('.amdgcn_target "amdgcn-amd-amdhsa--gfx950"')
    out.append('.text')
    descs = []
    for g in (gen_k1, gen_k2):
        t, d = g()
        out.append(t)
        descs.append(d)
    out.append('.section .rodata,"a"')
    for d in descs:
        out.append('.p2align 6')
        out.append(d)
    open(sys.argv[1], 'w').write('\n'.join(out) + '\n')


if __name__ == '__main__':
    main()
```
